```python
import torch

def _softmax(x, axis=-1):
    return torch.softmax(x, dim=axis)
def _gelu(x):
    return torch.nn.functional.gelu(x, approximate="tanh")
def _silu(x):
    return torch.nn.functional.silu(x)
def _sigmoid(x):
    return torch.sigmoid(x)
def _layernorm(x, axis=-1, eps=1e-5):
    m = x.mean(dim=axis, keepdim=True)
    v = x.var(dim=axis, keepdim=True, unbiased=False)
    return (x - m) / torch.sqrt(v + eps)
def _scatter_add(tgt, idx, src, axis=0):
    return tgt.clone().index_add_(axis, idx, src)
def _segment_sum(src, seg, n):
    out = torch.zeros((n,) + src.shape[1:], dtype=src.dtype)
    return out.index_add_(0, seg, src)
def _pad(x, pw):
    flat = tuple(v for pair in reversed(pw) for v in pair)
    return torch.nn.functional.pad(x, flat)

kernel_name = 'standalone__gqa_softmax__sampling'

def setup_inputs():

    _w = (lambda a: (lambda t: t.to(torch.bfloat16) if t.is_floating_point() else t)(torch.as_tensor(a)))
    B, Hq, Hkv, Sq, Sk, D = 16, 32, 8, 1, 4096, 128
    return {
        "q": _w((lambda *s: torch.randn(*s, dtype=torch.bfloat16) * 0.8)(B, Hq, Sq, D)),
        "k": _w((lambda *s: torch.randn(*s, dtype=torch.bfloat16) * 0.8)(B, Hkv, Sk, D)),
        "v": _w((lambda *s: torch.randn(*s, dtype=torch.bfloat16) * 0.05)(B, Hkv, Sk, D)),
    }

def reference(q, k, v):
    B, Hq, Sq, D = q.shape
    Hkv = k.shape[1]
    rep = Hq // Hkv
    k = (lambda x, n, axis: torch.repeat_interleave(x, n, dim=axis))(k, rep, axis=1)
    v = (lambda x, n, axis: torch.repeat_interleave(x, n, dim=axis))(v, rep, axis=1)
    scale = D ** -0.5
    scores = torch.einsum("bhqd,bhkd->bhqk", q, k) * scale
    p = _softmax(scores, axis=-1)
    return torch.einsum("bhqk,bhkd->bhqd", p, v)
```

```python
import sys, struct, math

NAME = 'standalone__gqa_softmax__sampling_kernel'

HEADER = """; Kernarg layout for this problem (48 bytes, ptrs only, base s[0:1]):
"""

def f32bits(x):
    return struct.unpack('<I', struct.pack('<f', x))[0]

def gen(NW=8, RT=2, X=8, G=1, flags='nt', stamps=0):
    n = 128 // NW
    ND = n - X
    assert n % RT == 0 and ND % RT == 0 and X % (4 * RT) == 0 and X >= 4 * RT
    CI = X // (4 * RT)
    stride = G * NW * 4096
    W = 8 * RT - 4
    KVB = 0x8000000
    STATS = 64
    REG1 = STATS + NW * 512
    REG2 = REG1 + NW * 2048
    SST = REG2 + NW * 2048
    LDS = SST + NW * X * 512
    C = f32bits(128 ** -0.5 * math.log2(math.e))

    L = []
    A = L.append
    vK, vVo, vVm, vS, vEm = 1, 2, 3, 4, 5
    vMc, vL, vAl, vT, vMx, vT2 = 6, 7, 8, 9, 10, 11
    vS0, vS1, vP0, vP1 = 12, 13, 14, 15
    vSc = 16
    vX = 20
    vQ = 28
    vAO, vAM = 44, 60
    vR = 76
    NV = vR + 32 * RT
    vAw = 0

    def r(b, k): return f'v[{b}:{b+k-1}]'

    A(HEADER.rstrip())
    A(f'; @launch grid=(256,1,1) block=({(NW+1)*64},1,1) lds={LDS}')
    A('.amdgcn_target "amdgcn-amd-amdhsa--gfx950"')
    A('.text')
    A(f'.globl {NAME}')
    A('.p2align 8')
    A(f'.type {NAME},@function')
    A(f'{NAME}:')
    A('    s_load_dwordx2 s[8:9], s[0:1], 8')
    A('    s_load_dwordx2 s[12:13], s[0:1], 16')
    A('    s_load_dwordx2 s[4:5], s[0:1], 0')
    A('    v_lshrrev_b32 v10, 6, v0')
    A('    v_and_b32 v0, 63, v0')
    A('    s_cmp_ge_u32 s2, 256')
    A('    v_readfirstlane_b32 s20, v10')
    A('    s_cbranch_scc1 L_end')
    A('    s_lshr_b32 s31, s2, 1')
    A('    s_and_b32 s30, s2, 1')
    A(f'    s_cmp_eq_u32 s20, {NW}')
    A('    s_cbranch_scc1 L_helper')
    A('    v_lshrrev_b32 v10, 4, v0')
    A('    v_lshlrev_b32 v1, 4, v10')
    A('    v_and_b32 v11, 1, v0')
    A('    v_lshl_or_b32 v1, v11, 8, v1')
    A('    v_bfe_u32 v11, v0, 1, 1')
    A('    v_lshl_or_b32 v1, v11, 11, v1')
    A('    v_bfe_u32 v11, v0, 2, 2')
    A('    v_lshl_or_b32 v1, v11, 9, v1')
    A(f'    s_mov_b32 s10, {KVB:#x}')
    A('    s_mov_b32 s11, 0x20000')
    A('    s_lshl_b32 s21, s31, 20')
    if G == 1:
        A('    s_lshl_b32 s22, s30, 19')
    else:
        A(f'    s_mul_i32 s22, s30, {NW*4096}')
    A('    s_add_u32 s21, s21, s22')
    A('    s_lshl_b32 s22, s20, 12')
    A('    s_add_u32 s21, s21, s22')
    A('    v_lshrrev_b32 v11, 3, v0')
    A('    v_lshlrev_b32 v3, 8, v11')
    A('    v_and_b32 v11, 7, v0')
    A('    v_lshl_or_b32 v3, v11, 4, v3')
    A('    s_lshl_b32 s22, s30, 7')
    A('    v_or_b32 v3, s22, v3')
    A('    v_xor_b32 v2, 0x80, v3')
    A(f'    s_mov_b32 s14, {KVB:#x}')
    A('    s_mov_b32 s15, 0x20000')
    A('    v_bfe_u32 v11, v0, 1, 2')
    A('    v_lshlrev_b32 v12, 4, v10')
    A('    v_lshl_or_b32 v12, v11, 8, v12')
    A('    s_lshl_b32 s22, s31, 10')
    A('    s_mov_b32 s6, 0x20000')
    A('    s_mov_b32 s7, 0x20000')
    A(f'    s_mov_b32 s18, {KVB if ND > 0 else 0:#x}')
    A('    s_mov_b32 s19, 0x20000')
    A(f'    s_add_u32 s23, s21, {ND*stride}')
    A('    s_waitcnt lgkmcnt(0)')

    def ldK(slot):
        for j in range(4):
            A(f'    buffer_load_dwordx4 {r(vR+32*slot+4*j,4)}, v{vK}, s[8:11], s21 offen offset:{64*j} {flags}')
    def ldV(slot):
        b = vR + 32*slot + 16
        A(f'    buffer_load_dwordx4 {r(b,4)}, v{vVo}, s[12:15], s21 offen {flags}')
        A(f'    buffer_load_dwordx4 {r(b+4,4)}, v{vVm}, s[16:19], s21 offen {flags}')
        A(f'    buffer_load_dwordx4 {r(b+8,4)}, v{vVo}, s[12:15], s21 offen offset:2048 {flags}')
        A(f'    buffer_load_dwordx4 {r(b+12,4)}, v{vVm}, s[16:19], s21 offen offset:2048 {flags}')
        A(f'    s_add_u32 s21, s21, {stride}')
    def ldC(grp, srd='s[12:15]'):
        b = vR + 16*grp
        for t in range(2):
            A(f'    buffer_load_dwordx4 {r(b+8*t,4)}, v{vVm}, {srd}, s23 offen {flags}')
            A(f'    buffer_load_dwordx4 {r(b+8*t+4,4)}, v{vVm}, {srd}, s23 offen offset:2048 {flags}')
            A(f'    s_add_u32 s23, s23, {stride}')

    ldK(0)
    A('    s_mov_b32 s16, s12')
    A('    s_mov_b32 s17, s13')
    for j in range(4):
        A(f'    buffer_load_dwordx4 {r(vQ+4*j,4)}, v12, s[4:7], s22 offen offset:{64*j}')
    ldV(0)
    for s in range(1, RT):
        ldK(s); ldV(s)
    A(f'    s_mov_b32 s25, {C:#x}')
    A('    s_mov_b32 s26, 0xff00ff00')
    A('    s_mov_b32 s27, 0xff00ff00')
    A('    s_mov_b32 s28, 0x00ff00ff')
    A('    s_mov_b32 s29, 0xff00ff00')
    A('    v_and_b32 v11, 1, v0')
    A('    v_lshlrev_b32 v11, 4, v11')
    A('    v_mov_b32 v12, 0xffff')
    A(f'    v_lshlrev_b32 v{vEm}, v11, v12')
    A(f'    s_mul_i32 s22, s20, {X*512}')
    A(f'    s_add_u32 s22, s22, {SST}')
    A(f'    v_lshlrev_b32 v{vS}, 3, v0')
    A(f'    v_add_u32 v{vS}, s22, v{vS}')
    A(f'    v_mov_b32 v{vMc}, 0xff800000')
    A(f'    v_mov_b32 v{vL}, 0')
    for k in (1, 2, 5, 6):
        A(f'    v_mov_b32 v{vX+k}, 0')
    for k in range(32):
        A(f'    v_mov_b32 v{vAO+k}, 0')
    A('    s_mov_b32 s24, 0')
    A('    s_barrier')

    def pv(acc, vb, xb):
        A(f'    v_mfma_f32_16x16x16_bf16 {r(acc,4)}, {r(vb,2)}, {r(xb,2)}, {r(acc,4)}')
        A(f'    v_mfma_f32_16x16x16_bf16 {r(acc+4,4)}, {r(vb,2)}, {r(xb+2,2)}, {r(acc+4,4)}')
        A(f'    v_mfma_f32_16x16x16_bf16 {r(acc+8,4)}, {r(vb+2,2)}, {r(xb,2)}, {r(acc+8,4)}')
        A(f'    v_mfma_f32_16x16x16_bf16 {r(acc+12,4)}, {r(vb+2,2)}, {r(xb+2,2)}, {r(acc+12,4)}')

    def xlane(op, v):
        A(f'    {op}_dpp v{v}, v{v}, v{v} row_ror:8 row_mask:0xf bank_mask:0xf')
        for sw in ('v_permlane16_swap_b32', 'v_permlane32_swap_b32'):
            A(f'    v_mov_b32 v{vT}, v{v}')
            A('    s_nop 1')
            A(f'    {sw} v{v}, v{vT}')
            A(f'    {op} v{v}, v{v}, v{vT}')

    def tile(slot, last, first_wait=None):
        kb = vR + 32*slot
        vb = kb + 16
        A(f'    s_waitcnt vmcnt({W if first_wait is None else first_wait})')
        for j in range(4):
            c = '0' if j == 0 else r(vSc, 4)
            A(f'    v_mfma_f32_16x16x32_bf16 {r(vSc,4)}, {r(kb+4*j,4)}, {r(vQ+4*j,4)}, {c}')
        if last:
            ldC(2*slot)
            A('    s_nop 1')
        else:
            ldK(slot)
            A('    s_nop 3')
        A(f'    v_cndmask_b32 v{vS0}, v{vSc}, v{vSc+1}, s[26:27]')
        A(f'    v_cndmask_b32 v{vS1}, v{vSc+2}, v{vSc+3}, s[26:27]')
        A(f'    v_max_f32 v{vMx}, v{vS0}, v{vS1}')
        A(f'    ds_write_b64 v{vS}, {r(vS0,2)}')
        A(f'    v_add_u32 v{vS}, s30, v{vS}')
        xlane('v_max_f32', vMx)
        A(f'    v_mul_f32 v{vMx}, s25, v{vMx}')
        A(f'    v_max_f32 v{vMx}, v{vMc}, v{vMx}')
        A(f'    v_sub_f32 v{vAl}, v{vMc}, v{vMx}')
        A(f'    v_fma_f32 v{vP0}, v{vS0}, s25, -v{vMx}')
        A(f'    v_fma_f32 v{vP1}, v{vS1}, s25, -v{vMx}')
        A(f'    v_exp_f32 v{vAl}, v{vAl}')
        A(f'    v_exp_f32 v{vP0}, v{vP0}')
        A(f'    v_exp_f32 v{vP1}, v{vP1}')
        A(f'    v_mov_b32 v{vMc}, v{vMx}')
        A(f'    v_fma_f32 v{vL}, v{vL}, v{vAl}, v{vP0}')
        A(f'    v_cvt_pk_bf16_f32 v{vT}, v{vP0}, v{vP0}')
        A(f'    v_cvt_pk_bf16_f32 v{vT2}, v{vP1}, v{vP1}')
        A(f'    v_add_f32 v{vL}, v{vL}, v{vP1}')
        A(f'    v_and_b32 v{vX}, v{vT}, v{vEm}')
        A(f'    v_and_b32 v{vX+3}, v{vT}, v{vEm}')
        A(f'    v_and_b32 v{vX+4}, v{vT2}, v{vEm}')
        A(f'    v_and_b32 v{vX+7}, v{vT2}, v{vEm}')
        for k in range(16):
            A(f'    v_pk_mul_f32 {r(vAO+2*k,2)}, {r(vAO+2*k,2)}, {r(vAl,2)} op_sel_hi:[1,0]')
        A(f'    s_waitcnt vmcnt({W})')
        A('    s_nop 0')
        pv(vAO, vb, vX)
        pv(vAM, vb+4, vX)
        pv(vAO, vb+8, vX+4)
        pv(vAM, vb+12, vX+4)
        if last:
            ldC(2*slot+1)
        else:
            ldV(slot)

    NIT = n // RT
    A('    s_mov_b32 s30, %d' % (512 if ND == 0 else 0))
    A(f'    s_waitcnt vmcnt({8*RT-4})')
    A('L_loop:')
    A(f'    s_cmp_lt_u32 s24, {ND//RT - 1 if ND > 0 else 0}')
    A(f'    s_cselect_b32 s18, {KVB:#x}, 0')
    A(f'    s_cmp_ge_u32 s24, {ND//RT}')
    A('    s_cselect_b32 s30, 512, 0')
    for s in range(RT):
        tile(s, False)
    A('    s_add_u32 s24, s24, 1')
    A(f'    s_cmp_lt_u32 s24, {NIT-1}')
    A('    s_cbranch_scc1 L_loop')
    A('    s_mov_b32 s30, 512')
    for s in range(RT):
        tile(s, True)
    xlane('v_add_f32', vL)
    A(f'    s_lshl_b32 s22, s20, 9')
    A(f'    v_lshlrev_b32 v{vT2}, 3, v0')
    A(f'    v_add_u32 v{vT2}, s22, v{vT2}')
    A(f'    ds_write_b64 v{vT2}, {r(vMc,2)} offset:{STATS}')
    A(f'    s_mul_i32 s22, s20, {X*512}')
    A(f'    s_add_u32 s22, s22, {SST}')
    A(f'    v_lshlrev_b32 v{vS}, 3, v0')
    A(f'    v_add_u32 v{vS}, s22, v{vS}')
    A(f'    v_lshrrev_b32 v{vT}, 5, v0')
    A(f'    v_lshlrev_b32 v{vT}, 10, v{vT}')
    A(f'    v_bfe_u32 v{vT2}, v0, 4, 1')
    A(f'    v_lshl_or_b32 v{vT}, v{vT2}, 7, v{vT}')
    A(f'    v_and_b32 v{vT2}, 7, v0')
    A(f'    v_lshl_or_b32 v{vT}, v{vT2}, 4, v{vT}')
    A('    s_lshl_b32 s22, s20, 11')
    A(f'    v_add_u32 v{vAw}, s22, v{vT}')
    A(f'    v_mov_b32 v{vT}, 0')
    A(f'    v_mov_b32 v{vT2}, 1')
    def put_acc(acc, reg, cnt):
        A('    s_mov_b64 exec, s[28:29]')
        for q in range(4):
            A(f'    ds_write_b128 v{vAw}, {r(acc+4*q,4)} offset:{reg+256*q}')
        A('    s_mov_b64 exec, 1')
        A(f'    ds_add_u32 v{vT}, v{vT2} offset:{cnt}')
        A('    s_mov_b64 exec, -1')
    put_acc(vAO, REG1, 0)
    for k in range(4):
        A(f'    v_mov_b32 v{vQ+4*k+1}, 0')
        A(f'    v_mov_b32 v{vQ+4*k+2}, 0')
    if CI > 1:
        A('    s_mov_b32 s24, 0')
        A(f'    s_mov_b32 s18, {KVB:#x}')
        A('L_cloop:')
        A(f'    s_cmp_lt_u32 s24, {CI-1}')
        A(f'    s_cselect_b32 s18, {KVB:#x}, 0')
    for g in range(2*RT):
        A(f'    ds_read_b64 {r(vSc,2)}, v{vS} offset:{1024*g}')
        A(f'    ds_read_b64 {r(vSc+2,2)}, v{vS} offset:{1024*g+512}')
        A('    s_waitcnt lgkmcnt(0)')
        for k in range(4):
            A(f'    v_fma_f32 v{vSc+k}, v{vSc+k}, s25, -v{vMc}')
        for k in range(4):
            A(f'    v_exp_f32 v{vSc+k}, v{vSc+k}')
        A('    s_nop 0')
        for k in range(4):
            A(f'    v_cvt_pk_bf16_f32 v{vSc+k}, v{vSc+k}, v{vSc+k}')
        for k in range(4):
            A(f'    v_and_b32 v{vQ+4*k}, v{vSc+k}, v{vEm}')
            A(f'    v_and_b32 v{vQ+4*k+3}, v{vSc+k}, v{vEm}')
        A('    s_nop 0')
        for k in range(4):
            if CI > 1:
                cnt = 8*RT - 1 - k
            else:
                cnt = 8*RT - 4*g - 1 - k
            A(f'    s_waitcnt vmcnt({cnt})')
            pv(vAM, vR + 16*g + 4*k, vQ + 4*k)
        if CI > 1:
            ldC(g, 's[16:19]')
    if CI > 1:
        A(f'    v_add_u32 v{vS}, {2048*RT}, v{vS}')
        A('    s_add_u32 s24, s24, 1')
        A(f'    s_cmp_lt_u32 s24, {CI}')
        A('    s_cbranch_scc1 L_cloop')
        A('    s_nop 4')
    else:
        A('    s_nop 6')
    put_acc(vAM, REG2, 4)
    A('    s_endpgm')

    hF = 40
    hO = 24
    hM, hLs = 28, 29
    hP = 30
    hD = 64
    A('L_helper:')
    A('    s_load_dwordx2 s[32:33], s[0:1], 40')
    A('    s_load_dwordx2 s[36:37], s[0:1], 32')
    A('    s_load_dwordx2 s[40:41], s[0:1], 24')
    A('    v_mov_b32 v1, 0')
    A('    v_mov_b32 v2, 0')
    A('    v_mov_b32 v3, 0')
    A('    ds_write_b64 v1, v[2:3]')
    A('    s_mov_b32 s34, 0x20000000')
    A('    s_mov_b32 s35, 0x20000')
    A('    s_mov_b32 s38, 256')
    A('    s_mov_b32 s39, 0x20000')
    A('    s_mov_b32 s42, 0x20000')
    A('    s_mov_b32 s43, 0x20000')
    A('    s_waitcnt lgkmcnt(0)')
    A('    s_barrier')
    A('    v_lshlrev_b32 v5, 4, v0')
    A('    v_lshlrev_b32 v6, 3, v0')
    A(f'    v_add_u32 v7, {REG1}, v5')
    A('    v_bfe_u32 v8, v0, 1, 2')
    A('    v_lshlrev_b32 v8, 8, v8')
    A('    v_bfe_u32 v9, v0, 3, 1')
    A('    v_lshl_or_b32 v8, v9, 6, v8')
    A('    v_lshrrev_b32 v9, 4, v0')
    A('    v_lshl_or_b32 v8, v9, 2, v8')
    A('    v_and_b32 v9, 1, v0')
    A('    v_lshl_or_b32 v8, v9, 1, v8')
    A('    s_lshl_b32 s44, s31, 10')
    A('    s_lshl_b32 s22, s30, 7')
    A('    s_add_u32 s44, s44, s22')
    A('    s_lshl_b32 s45, s2, 11')
    A('    s_xor_b32 s46, s45, 2048')
    A('    s_and_b32 s22, s2, 0xfc')
    A('    v_mov_b32 v10, s22')
    A('    s_and_b32 s22, s2, 3')
    A('    s_lshl_b32 s22, s22, 3')
    A('    s_lshl_b32 s47, 1, s22')
    A('    s_xor_b32 s22, s22, 8')
    A('    s_lshl_b32 s48, 1, s22')
    A('    v_mov_b32 v11, s47')
    for k in range(4):
        A(f'    v_mov_b32 v{hO+k}, 0')
    A('    s_mov_b32 s49, 0')
    A('L_hphase:')
    A('    s_mov_b32 s50, 0x400000')
    A('L_hpoll:')
    A('    ds_read_b32 v12, v1')
    A('    s_waitcnt lgkmcnt(0)')
    A('    v_readfirstlane_b32 s22, v12')
    A('    s_sub_u32 s50, s50, 1')
    A('    s_cbranch_scc1 L_end')
    A(f'    s_cmp_ge_u32 s22, {NW}')
    A('    s_cbranch_scc1 L_hgo')
    A('    s_sleep 1')
    A('    s_branch L_hpoll')
    A('L_hgo:')
    A('    s_cmp_eq_u32 s49, 0')
    A('    s_cbranch_scc0 L_hred')
    for w in range(NW):
        A(f'    ds_read_b64 {r(hD+2*w,2)}, v6 offset:{STATS+512*w}')
    A('    s_waitcnt lgkmcnt(0)')
    A(f'    v_max_f32 v{hM}, v{hD}, v{hD+2}')
    for w in range(2, NW, 2):
        A(f'    v_max3_f32 v{hM}, v{hM}, v{hD+2*w}, v{hD+2*w+2}')
    for w in range(NW):
        A(f'    v_sub_f32 v{hF+2*w}, v{hD+2*w}, v{hM}')
    for w in range(NW):
        A(f'    v_exp_f32 v{hF+2*w}, v{hF+2*w}')
    A('    s_nop 0')
    A(f'    v_mul_f32 v{hLs}, v{hF}, v{hD+1}')
    for w in range(1, NW):
        A(f'    v_fma_f32 v{hLs}, v{hF+2*w}, v{hD+2*w+1}, v{hLs}')
    A('L_hred:')
    NS = 2 * NW
    PD = 10
    for s in range(min(PD, NS)):
        A(f'    ds_read_b128 {r(hD+4*s,4)}, v7 offset:{1024*s}')
    for s in range(NS):
        A(f'    s_waitcnt lgkmcnt({min(NS, s+PD) - s - 1})')
        f = hF + 2*(s >> 1)
        A(f'    v_pk_fma_f32 {r(hO,2)}, {r(hD+4*s,2)}, {r(f,2)}, {r(hO,2)} op_sel_hi:[1,0,1]')
        A(f'    v_pk_fma_f32 {r(hO+2,2)}, {r(hD+4*s+2,2)}, {r(f,2)}, {r(hO+2,2)} op_sel_hi:[1,0,1]')
        if s + PD < NS:
            A(f'    ds_read_b128 {r(hD+4*(s+PD),4)}, v7 offset:{1024*(s+PD)}')
    A('    s_cmp_eq_u32 s49, 0')
    A('    s_cbranch_scc0 L_hout')
    A(f'    buffer_store_dwordx4 {r(hO,4)}, v5, s[32:35], s45 offen sc1')
    A(f'    buffer_store_dwordx2 {r(hM,2)}, v6, s[32:35], s45 offen offset:1024 sc1')
    A('    s_waitcnt vmcnt(0)')
    A('    s_mov_b64 exec, 1')
    A('    buffer_atomic_add v11, v10, s[36:39], 0 offen sc1')
    A('    s_mov_b64 exec, -1')
    A('    s_mov_b32 s50, 0x100000')
    A('L_hflag:')
    A('    buffer_load_dword v12, v10, s[36:39], 0 offen sc1')
    A('    s_waitcnt vmcnt(0)')
    A('    v_readfirstlane_b32 s22, v12')
    A('    s_sub_u32 s50, s50, 1')
    A('    s_cbranch_scc1 L_end')
    A('    s_and_b32 s22, s22, s48')
    A('    s_cbranch_scc1 L_hgot')
    A('    s_sleep 4')
    A('    s_branch L_hflag')
    A('L_hgot:')
    A(f'    buffer_load_dwordx4 {r(hO,4)}, v5, s[32:35], s46 offen sc1')
    A(f'    buffer_load_dwordx2 {r(hP,2)}, v6, s[32:35], s46 offen offset:1024 sc1')
    A('    s_waitcnt vmcnt(0)')
    A(f'    v_max_f32 v13, v{hM}, v{hP}')
    A(f'    v_sub_f32 v14, v{hM}, v13')
    A(f'    v_sub_f32 v15, v{hP}, v13')
    A('    v_exp_f32 v14, v14')
    A('    v_exp_f32 v15, v15')
    A('    s_nop 0')
    A(f'    v_mul_f32 v16, v14, v{hLs}')
    A(f'    v_fma_f32 v16, v15, v{hP+1}, v16')
    A('    v_rcp_f32 v16, v16')
    A('    s_nop 0')
    A('    v_mul_f32 v14, v14, v16')
    A('    v_mul_f32 v15, v15, v16')
    for w in range(NW):
        A(f'    v_mul_f32 v{hF+2*w}, v{hF+2*w}, v14')
    for k in range(4):
        A(f'    v_mul_f32 v{hO+k}, v{hO+k}, v15')
    A(f'    v_add_u32 v7, {REG2-REG1}, v7')
    A('    v_mov_b32 v1, 4')
    A('    s_mov_b32 s49, 1')
    A('    s_branch L_hphase')
    A('L_hout:')
    for k in range(4):
        A(f'    v_cvt_pk_bf16_f32 v{hO+k}, v{hO+k}, v{hO+k}')
    for k in range(4):
        A(f'    buffer_store_short v{hO+k}, v8, s[40:43], s44 offen offset:{16*k}')
    A('L_end:')
    A('    s_endpgm')
    NVT = max(NV, hD + 4*NS)
    A('.section .rodata,"a"')
    A('.p2align 6')
    A(f'.amdhsa_kernel {NAME}')
    A(f'  .amdhsa_next_free_vgpr {NVT}')
    A('  .amdhsa_next_free_sgpr 56')
    A(f'  .amdhsa_accum_offset {(NVT+3)//4*4}')
    A('  .amdhsa_group_segment_fixed_size 0')
    A('  .amdhsa_kernarg_size 48')
    A('  .amdhsa_user_sgpr_count 2')
    A('  .amdhsa_user_sgpr_kernarg_segment_ptr 1')
    A('  .amdhsa_system_sgpr_workgroup_id_x 1')
    A('.end_amdhsa_kernel')
    return '\n'.join(L) + '\n', (NW+1)*64, LDS

if __name__ == '__main__':
    import json
    cfg = json.loads(sys.argv[2]) if len(sys.argv) > 2 else {}
    s, blk, lds = gen(**cfg)
    open(sys.argv[1], 'w').write(s)
    print(blk, lds)
```

```python
import sys, struct, math

NAME = 'standalone__gqa_softmax__sampling_kernel'

HEADER = """; Kernarg layout for this problem (48 bytes, ptrs only, base s[0:1]):
"""


DOC = """;
;
"""

def f32bits(x):
    return struct.unpack('<I', struct.pack('<f', x))[0]

def gen(NW=4, X=8, G=1, kf='nt', vf='nt', stamps=0, msl=0, trace=0, PB=0, LA=3, early=1, hsl=1, nomsg=0, nocomp=0, of='', resend=1, bar=1, abl=0, ls=0, PDo=0, cf='sc1', cl=0, delay=0, XM=0, CLA=0, lazy=0, bar2=0):
    n = 128 // NW
    NC = X // 2
    assert X % 2 == 0 and n % 2 == 0
    assert LA <= (3 if early else 4)
    PD = (PDo or n // X) if X else 0
    assert not X or (PD * X <= n and PD & (PD - 1) == 0 and PD >= 2)
    DS = n - PD * X
    def deferred(i):
        return bool(X) and i % PD == PD - 1 and i >= DS
    first_def = DS + PD - 1 if X else 0
    CLA = CLA or LA
    NB = min(NC, max(CLA, 4))
    PEEL = max(2, (CLA + 3) // 4 * 2)
    stride = G * NW * 4096
    KVB = 0x8000000
    STATS = 64
    REG1 = STATS + NW * 512
    REG2 = REG1 + NW * 2048
    SST = REG2 + NW * 2048
    LDS = SST + NW * X * 512
    C = f32bits(128 ** -0.5 * math.log2(math.e))

    L = []
    A = L.append
    vK, vVo, vVm, vS, vEm = 1, 2, 3, 4, 5
    vMc, vL, vAl, vT, vMx, vT2 = 6, 7, 8, 9, 10, 11
    vS0, vS1, vP0, vP1 = 12, 13, 14, 15
    vSc = 16
    vX = 20
    vQ = 28
    vAO, vAM = 44, 60
    vR = 76
    vCX = vR + 64
    NV = vCX + 16 * NB
    vTr = NV
    if trace:
        NV += 1
    vAw = 0

    def r(b, k): return f'v[{b}:{b+k-1}]'

    def stamp(i):
        if stamps:
            A(f'    s_memrealtime s[{64+2*i}:{65+2*i}]')
            A('    s_waitcnt lgkmcnt(0)')
    def dump_stamps(cnt):
        if not stamps:
            return
        A('    s_load_dwordx2 s[60:61], s[0:1], 40')
        A('    s_mov_b32 s62, 0x20000000')
        A('    s_mov_b32 s63, 0x20000')
        A('    s_lshl_b32 s58, s2, 4')
        A('    s_add_u32 s58, s58, s20')
        A('    s_lshl_b32 s58, s58, 6')
        A('    s_add_u32 s58, s58, 0x100000')
        A('    s_mov_b64 exec, 1')
        A('    v_mov_b32 v1, 0')
        A('    s_waitcnt lgkmcnt(0)')
        for i in range(cnt):
            A(f'    v_mov_b32 v2, s{64+2*i}')
            A(f'    buffer_store_dword v2, v1, s[60:63], s58 offen offset:{4*i}')
    def light():
        if not ls:
            return
        A('    s_memrealtime s[66:67]')
        A('    s_load_dwordx2 s[60:61], s[0:1], 40')
        A('    s_mov_b32 s62, 0x20000000')
        A('    s_mov_b32 s63, 0x20000')
        A('    s_lshl_b32 s58, s2, 3')
        A('    s_add_u32 s58, s58, s20')
        A('    s_lshl_b32 s58, s58, 3')
        A('    s_add_u32 s58, s58, 0x300000')
        A('    s_mov_b64 exec, 1')
        A('    v_mov_b32 v1, 0')
        A('    s_waitcnt lgkmcnt(0)')
        A('    v_mov_b32 v2, s64')
        A('    v_mov_b32 v3, s66')
        A('    buffer_store_dwordx2 v[2:3], v1, s[60:63], s58 offen')
    def tr():
        if trace:
            A('    s_memrealtime s[90:91]')
            A('    s_waitcnt lgkmcnt(0)')
            A(f'    v_writelane_b32 v{vTr}, s90, m0')
            A('    s_add_u32 m0, m0, 1')

    Q = []
    def wait(tag):
        idx = max(i for i, t in enumerate(Q) if t == tag)
        A(f'    s_waitcnt vmcnt({len(Q) - 1 - idx})')
        del Q[:idx + 1]

    A(HEADER.rstrip())
    A(f'; @launch grid=(256,1,1) block=({(NW+1)*64},1,1) lds={LDS}')
    A(DOC.rstrip())
    A('.amdgcn_target "amdgcn-amd-amdhsa--gfx950"')
    A('.text')
    A(f'.globl {NAME}')
    A('.p2align 8')
    A(f'.type {NAME},@function')
    A(f'{NAME}:')
    A('    s_load_dwordx2 s[8:9], s[0:1], 8')
    A('    s_load_dwordx2 s[12:13], s[0:1], 16')
    A('    s_load_dwordx2 s[4:5], s[0:1], 0')
    A('    v_lshrrev_b32 v10, 6, v0')
    A('    v_and_b32 v0, 63, v0')
    A('    s_cmp_ge_u32 s2, 256')
    A('    v_readfirstlane_b32 s20, v10')
    A('    s_cbranch_scc1 L_end')
    stamp(0)
    if delay:
        A(f'    s_and_b32 s22, s2, {delay}')
        A('    s_cbranch_scc0 L_nodelay')
        A('    s_mov_b32 s22, 40')
        A('L_delay:')
        A('    s_sleep 64')
        A('    s_sub_u32 s22, s22, 1')
        A('    s_cbranch_scc0 L_delay')
        A('L_nodelay:')
    if ls:
        A('    s_memrealtime s[64:65]')
    if XM == 1:
        A('    s_and_b32 s31, s2, 7')
        A('    s_lshl_b32 s31, s31, 4')
        A('    s_lshr_b32 s30, s2, 4')
        A('    s_or_b32 s31, s31, s30')
        A('    s_bfe_u32 s30, s2, 0x10003')
        PB = 3
    elif XM == 2:
        A('    s_bfe_u32 s31, s2, 0x20001')
        A('    s_lshl_b32 s31, s31, 5')
        A('    s_lshr_b32 s30, s2, 3')
        A('    s_or_b32 s31, s31, s30')
        A('    s_and_b32 s30, s2, 1')
    elif PB == 0:
        A('    s_lshr_b32 s31, s2, 1')
        A('    s_and_b32 s30, s2, 1')
    else:
        A(f'    s_lshr_b32 s31, s2, {PB+1}')
        A(f'    s_lshl_b32 s31, s31, {PB}')
        A(f'    s_and_b32 s30, s2, {(1<<PB)-1}')
        A('    s_or_b32 s31, s31, s30')
        A(f'    s_bfe_u32 s30, s2, {PB | (1<<16):#x}')
    A(f'    s_cmp_eq_u32 s20, {NW}')
    A('    s_cbranch_scc1 L_helper')
    A('    v_lshrrev_b32 v10, 4, v0')
    A('    v_lshlrev_b32 v1, 4, v10')
    A('    v_and_b32 v11, 1, v0')
    A('    v_lshl_or_b32 v1, v11, 8, v1')
    A('    v_bfe_u32 v11, v0, 1, 1')
    A('    v_lshl_or_b32 v1, v11, 11, v1')
    A('    v_bfe_u32 v11, v0, 2, 2')
    A('    v_lshl_or_b32 v1, v11, 9, v1')
    A(f'    s_mov_b32 s10, {KVB:#x}')
    A('    s_mov_b32 s11, 0x20000')
    A('    s_lshl_b32 s21, s31, 20')
    if G == 1:
        A('    s_lshl_b32 s22, s30, 19')
    else:
        A(f'    s_mul_i32 s22, s30, {NW*4096}')
    A('    s_add_u32 s21, s21, s22')
    A('    s_lshl_b32 s22, s20, 12')
    A('    s_add_u32 s21, s21, s22')
    A('    v_lshrrev_b32 v11, 3, v0')
    A('    v_lshlrev_b32 v3, 8, v11')
    A('    v_and_b32 v11, 7, v0')
    A('    v_lshl_or_b32 v3, v11, 4, v3')
    A('    s_lshl_b32 s22, s30, 7')
    A('    v_or_b32 v3, s22, v3')
    A('    v_xor_b32 v2, 0x80, v3')
    A(f'    s_mov_b32 s14, {KVB:#x}')
    A('    s_mov_b32 s15, 0x20000')
    A('    v_bfe_u32 v11, v0, 1, 2')
    A('    v_lshlrev_b32 v12, 4, v10')
    A('    v_lshl_or_b32 v12, v11, 8, v12')
    A('    s_lshl_b32 s22, s31, 10')
    A('    s_mov_b32 s6, 0x20000')
    A('    s_mov_b32 s7, 0x20000')
    A(f'    s_mov_b32 s18, {0 if deferred(1) else KVB:#x}')
    A('    s_mov_b32 s19, 0x20000')
    A(f'    s_add_u32 s23, s21, {first_def*stride}')
    A('    s_mov_b32 s53, s21')
    A('    s_waitcnt lgkmcnt(0)')
    stamp(4)

    def kreg(i): return vR + 32*(i & 1)
    def vreg(i): return vR + 32*(i & 1) + 16
    def creg(g): return vCX + 16*(g % NB)
    def issue(j, rolled=False):
        if not rolled and j >= 2*n:
            g = j - 2*n
            if g >= NC:
                return
            for t in range(2):
                for u in range(2):
                    A(f'    buffer_load_dwordx4 {r(creg(g)+8*t+4*u,4)}, v{vVm}, s[12:15], s23 offen offset:{2048*u} {vf}')
                    Q.append((j, 2*t+u))
                A(f'    s_add_u32 s23, s23, {stride*PD}')
            return
        i = j >> 1
        if j & 1 == 0:
            for k in range(4):
                A(f'    buffer_load_dwordx4 {r(kreg(i)+4*k,4)}, v{vK}, s[8:11], s21 offen offset:{64*k} {kf}')
                Q.append((j, k))
            A(f'    s_add_u32 s21, s21, {stride}')
        else:
            dyn = rolled and X and (i & 1) == 1
            for t in range(2):
                A(f'    buffer_load_dwordx4 {r(vreg(i)+8*t,4)}, v{vVo}, s[12:15], s53 offen offset:{2048*t} {vf}')
                Q.append((j, 2*t))
                if rolled or not deferred(i):
                    srd = 's[16:19]' if dyn else 's[12:15]'
                    A(f'    buffer_load_dwordx4 {r(vreg(i)+8*t+4,4)}, v{vVm}, {srd}, s53 offen offset:{2048*t} {vf}')
                    Q.append((j, 2*t+1))
            A(f'    s_add_u32 s53, s53, {stride}')
    issued = set()
    def issue_upto(s, rolled):
        if rolled:
            issue(s + LA, True)
            return
        for j in list(range(s + LA, min(s + LA, 2*n - 1) + 1)) + list(range(2*n, s + CLA + 1)):
            if j not in issued:
                issued.add(j)
                issue(j)
    def wait_slot(j):
        idx = max(i for i, t in enumerate(Q) if t[0] == j)
        A(f'    s_waitcnt vmcnt({len(Q) - 1 - idx})')
        del Q[:idx + 1]

    issue(0, True)
    A('    s_mov_b32 s16, s12')
    A('    s_mov_b32 s17, s13')
    for j in range(4):
        A(f'    buffer_load_dwordx4 {r(vQ+4*j,4)}, v12, s[4:7], s22 offen offset:{64*j}')
        Q.append((0, 4+j))
    for j in range(1, LA):
        issue(j, True)
    A(f'    s_mov_b32 s25, {C:#x}')
    A('    s_mov_b32 s26, 0xff00ff00')
    A('    s_mov_b32 s27, 0xff00ff00')
    A('    s_mov_b32 s28, 0x00ff00ff')
    A('    s_mov_b32 s29, 0xff00ff00')
    A('    v_and_b32 v11, 1, v0')
    A('    v_lshlrev_b32 v11, 4, v11')
    A('    v_mov_b32 v12, 0xffff')
    A(f'    v_lshlrev_b32 v{vEm}, v11, v12')
    A(f'    s_mul_i32 s52, s20, {X*512}')
    A(f'    s_add_u32 s52, s52, {SST}')
    A(f'    v_lshlrev_b32 v{vS}, 3, v0')
    A(f'    v_add_u32 v{vS}, s52, v{vS}')
    A(f'    v_mov_b32 v{vMc}, 0xff800000')
    A(f'    v_mov_b32 v{vL}, 0')
    for k in (1, 2, 5, 6):
        A(f'    v_mov_b32 v{vX+k}, 0')
    for k in range(32):
        A(f'    v_mov_b32 v{vAO+k}, 0')
    A('    s_mov_b32 s24, 0')
    if trace:
        A('    s_mov_b32 m0, 0')
        A(f'    v_mov_b32 v{vTr}, 0')
    A('    s_barrier')

    def pv(acc, vb, xb):
        A(f'    v_mfma_f32_16x16x16_bf16 {r(acc,4)}, {r(vb,2)}, {r(xb,2)}, {r(acc,4)}')
        A(f'    v_mfma_f32_16x16x16_bf16 {r(acc+4,4)}, {r(vb,2)}, {r(xb+2,2)}, {r(acc+4,4)}')
        A(f'    v_mfma_f32_16x16x16_bf16 {r(acc+8,4)}, {r(vb+2,2)}, {r(xb,2)}, {r(acc+8,4)}')
        A(f'    v_mfma_f32_16x16x16_bf16 {r(acc+12,4)}, {r(vb+2,2)}, {r(xb+2,2)}, {r(acc+12,4)}')

    def xlane(op, v):
        A(f'    {op}_dpp v{v}, v{v}, v{v} row_ror:8 row_mask:0xf bank_mask:0xf')
        for sw in ('v_permlane16_swap_b32', 'v_permlane32_swap_b32'):
            A(f'    v_mov_b32 v{vT}, v{v}')
            A('    s_nop 1')
            A(f'    {sw} v{v}, v{vT}')
            A(f'    {op} v{v}, v{v}, v{vT}')

    def tile(i, rolled, own_now=True):
        kb, vb = kreg(i), vreg(i)
        wait_slot(2*i)
        if early:
            issue_upto(2*i, rolled)
        for j in range(4):
            c = '0' if j == 0 else r(vSc, 4)
            A(f'    v_mfma_f32_16x16x32_bf16 {r(vSc,4)}, {r(kb+4*j,4)}, {r(vQ+4*j,4)}, {c}')
        a0 = len(L)
        if not early:
            issue_upto(2*i, rolled)
        pad = 8 - (len(L) - a0)
        if pad > 0:
            A(f'    s_nop {pad-1}')
        A(f'    v_cndmask_b32 v{vS0}, v{vSc}, v{vSc+1}, s[26:27]')
        A(f'    v_cndmask_b32 v{vS1}, v{vSc+2}, v{vSc+3}, s[26:27]')
        A(f'    v_max_f32 v{vMx}, v{vS0}, v{vS1}')
        if rolled and X and (i & 1) == 1:
            A(f'    ds_write_b64 v{vS}, {r(vS0,2)}')
            A(f'    v_add_u32 v{vS}, s30, v{vS}')
        elif not rolled and deferred(i):
            A(f'    ds_write_b64 v{vS}, {r(vS0,2)}')
            A(f'    v_add_u32 v{vS}, 512, v{vS}')
        else:
            A('    s_nop 1')
        if lazy:
            lbl = f'L_keep{len(L)}'
            A(f'    v_mul_f32 v{vT}, s25, v{vMx}')
            A(f'    v_cmp_gt_f32 vcc, v{vT}, v{vMc}')
            A(f'    s_cbranch_vccz {lbl}')
            xlane('v_max_f32', vMx)
            A(f'    v_mul_f32 v{vMx}, s25, v{vMx}')
            A(f'    v_max_f32 v{vMx}, v{vMc}, v{vMx}')
            A(f'    v_sub_f32 v{vAl}, v{vMc}, v{vMx}')
            A(f'    v_exp_f32 v{vAl}, v{vAl}')
            A(f'    v_mov_b32 v{vMc}, v{vMx}')
            A(f'    v_mul_f32 v{vL}, v{vL}, v{vAl}')
            for k in range(16):
                A(f'    v_pk_mul_f32 {r(vAO+2*k,2)}, {r(vAO+2*k,2)}, {r(vAl,2)} op_sel_hi:[1,0]')
            A(f'{lbl}:')
            A(f'    v_fma_f32 v{vP0}, v{vS0}, s25, -v{vMc}')
            A(f'    v_fma_f32 v{vP1}, v{vS1}, s25, -v{vMc}')
            A(f'    v_exp_f32 v{vP0}, v{vP0}')
            A(f'    v_exp_f32 v{vP1}, v{vP1}')
            A('    s_nop 0')
            A(f'    v_cvt_pk_bf16_f32 v{vT}, v{vP0}, v{vP0}')
            A(f'    v_cvt_pk_bf16_f32 v{vT2}, v{vP1}, v{vP1}')
            A(f'    v_add_f32 v{vL}, v{vL}, v{vP0}')
            A(f'    v_and_b32 v{vX}, v{vT}, v{vEm}')
            A(f'    v_and_b32 v{vX+3}, v{vT}, v{vEm}')
            A(f'    v_and_b32 v{vX+4}, v{vT2}, v{vEm}')
            A(f'    v_and_b32 v{vX+7}, v{vT2}, v{vEm}')
            A(f'    v_add_f32 v{vL}, v{vL}, v{vP1}')
        else:
            xlane('v_max_f32', vMx)
            A(f'    v_mul_f32 v{vMx}, s25, v{vMx}')
            A(f'    v_max_f32 v{vMx}, v{vMc}, v{vMx}')
            A(f'    v_sub_f32 v{vAl}, v{vMc}, v{vMx}')
            A(f'    v_fma_f32 v{vP0}, v{vS0}, s25, -v{vMx}')
            A(f'    v_fma_f32 v{vP1}, v{vS1}, s25, -v{vMx}')
            A(f'    v_exp_f32 v{vAl}, v{vAl}')
            A(f'    v_exp_f32 v{vP0}, v{vP0}')
            A(f'    v_exp_f32 v{vP1}, v{vP1}')
            A(f'    v_mov_b32 v{vMc}, v{vMx}')
            A(f'    v_fma_f32 v{vL}, v{vL}, v{vAl}, v{vP0}')
            A(f'    v_cvt_pk_bf16_f32 v{vT}, v{vP0}, v{vP0}')
            A(f'    v_cvt_pk_bf16_f32 v{vT2}, v{vP1}, v{vP1}')
            A(f'    v_add_f32 v{vL}, v{vL}, v{vP1}')
            A(f'    v_and_b32 v{vX}, v{vT}, v{vEm}')
            A(f'    v_and_b32 v{vX+3}, v{vT}, v{vEm}')
            A(f'    v_and_b32 v{vX+4}, v{vT2}, v{vEm}')
            A(f'    v_and_b32 v{vX+7}, v{vT2}, v{vEm}')
            for k in range(16):
                A(f'    v_pk_mul_f32 {r(vAO+2*k,2)}, {r(vAO+2*k,2)}, {r(vAl,2)} op_sel_hi:[1,0]')
        wait_slot(2*i + 1)
        tr()
        if early:
            issue_upto(2*i + 1, rolled)
        A('    s_nop 0')
        pv(vAO, vb, vX)
        if own_now:
            pv(vAM, vb+4, vX)
        pv(vAO, vb+8, vX+4)
        if own_now:
            pv(vAM, vb+12, vX+4)
        if not early:
            issue_upto(2*i + 1, rolled)

    idx = max(i for i, t in enumerate(Q) if t[0] == 0)
    A(f'    s_waitcnt vmcnt({len(Q) - 1 - idx})')
    stamp(1)
    Q[:] = [t for t in Q if not (t[0] == 0 and t[1] >= 4)]
    Q0 = list(Q)
    NLOOP = (n - PEEL) // 2
    vodd = [j >> 1 for j in range(LA, LA + 4) if j & 1 and (j >> 1) & 1][0]
    A('L_loop:')
    if X:
        H = PD // 2
        A(f'    s_add_u32 s22, s24, {vodd >> 1}')
        A(f'    s_and_b32 s54, s22, {H-1}')
        A(f'    s_cmp_lg_u32 s54, {H-1}')
        A(f'    s_cselect_b32 s18, {KVB:#x}, 0')
        if DS:
            A(f'    s_cmp_lt_u32 s22, {DS//2}')
            A(f'    s_cselect_b32 s18, {KVB:#x}, s18')
        A(f'    s_and_b32 s54, s24, {H-1}')
        A(f'    s_cmp_eq_u32 s54, {H-1}')
        A('    s_cselect_b32 s30, 512, 0')
        if DS:
            A(f'    s_cmp_lt_u32 s24, {DS//2}')
            A('    s_cselect_b32 s30, 0, s30')
    tile(0, True)
    if bar2:
        A('    s_barrier')
    tile(1, True)
    assert [(j - 4, k) for j, k in Q] == Q0, (Q, Q0)
    A('    s_add_u32 s24, s24, 1')
    if bar == 1:
        A('    s_barrier')
    elif bar:
        A(f'    s_and_b32 s22, s24, {bar-1}')
        A('    s_cbranch_scc1 L_nobar')
        A('    s_barrier')
        A('L_nobar:')
    A(f'    s_cmp_lt_u32 s24, {NLOOP}')
    A('    s_cbranch_scc1 L_loop')
    Q[:] = [(j + 2*(n - PEEL), k) for j, k in Q0]
    rolled_slots = set(j for j, k in Q)
    for i in range(n - PEEL, n):
        tile(i, False, own_now=(2*i + 1 in rolled_slots or not deferred(i)))
        if bar2 == 2:
            A('    s_barrier')
    xlane('v_add_f32', vL)
    A(f'    s_lshl_b32 s22, s20, 9')
    A(f'    v_lshlrev_b32 v{vT2}, 3, v0')
    A(f'    v_add_u32 v{vS}, s52, v{vT2}')
    A(f'    v_add_u32 v{vT2}, s22, v{vT2}')
    A(f'    ds_write_b64 v{vT2}, {r(vMc,2)} offset:{STATS}')
    A(f'    v_lshrrev_b32 v{vT}, 5, v0')
    A(f'    v_lshlrev_b32 v{vT}, 10, v{vT}')
    A(f'    v_bfe_u32 v{vT2}, v0, 4, 1')
    A(f'    v_lshl_or_b32 v{vT}, v{vT2}, 7, v{vT}')
    A(f'    v_and_b32 v{vT2}, 7, v0')
    A(f'    v_lshl_or_b32 v{vT}, v{vT2}, 4, v{vT}')
    A('    s_lshl_b32 s22, s20, 11')
    A(f'    v_add_u32 v{vAw}, s22, v{vT}')
    A(f'    v_mov_b32 v{vT}, 0')
    A(f'    v_mov_b32 v{vT2}, 1')
    def put_acc(acc, reg, cnt):
        A('    s_mov_b64 exec, s[28:29]')
        for q in range(4):
            A(f'    ds_write_b128 v{vAw}, {r(acc+4*q,4)} offset:{reg+256*q}')
        A('    s_mov_b64 exec, 1')
        A(f'    ds_add_u32 v{vT}, v{vT2} offset:{cnt}')
        A('    s_mov_b64 exec, -1')
    put_acc(vAO, REG1, 0)
    stamp(2)
    for k in range(4 if NC else 0):
        A(f'    v_mov_b32 v{vQ+4*k+1}, 0')
        A(f'    v_mov_b32 v{vQ+4*k+2}, 0')
    for g in range(NC):
        A(f'    ds_read_b64 {r(vSc,2)}, v{vS} offset:{1024*g}')
        A(f'    ds_read_b64 {r(vSc+2,2)}, v{vS} offset:{1024*g+512}')
        A('    s_waitcnt lgkmcnt(0)')
        for k in range(4):
            A(f'    v_fma_f32 v{vSc+k}, v{vSc+k}, s25, -v{vMc}')
        for k in range(4):
            A(f'    v_exp_f32 v{vSc+k}, v{vSc+k}')
        A('    s_nop 0')
        for k in range(4):
            A(f'    v_cvt_pk_bf16_f32 v{vSc+k}, v{vSc+k}, v{vSc+k}')
        for k in range(4):
            A(f'    v_and_b32 v{vQ+4*k}, v{vSc+k}, v{vEm}')
            A(f'    v_and_b32 v{vQ+4*k+3}, v{vSc+k}, v{vEm}')
        A('    s_nop 0')
        j = 2*n + g
        for k in range(4):
            if (j, k) in Q:
                idx = Q.index((j, k))
                A(f'    s_waitcnt vmcnt({len(Q) - 1 - idx})')
                del Q[:idx + 1]
            else:
                A('    s_nop 0')
            pv(vAM, creg(g) + 4*k, vQ + 4*k)
        tr()
        issue_upto(j, False)
    assert not Q
    if NC:
        A('    s_nop 6')
    put_acc(vAM, REG2, 4)
    stamp(3)
    dump_stamps(5)
    light()
    if trace:
        A('    s_mov_b64 exec, -1')
        A('    v_mbcnt_lo_u32_b32 v1, -1, 0')
        A('    v_mbcnt_hi_u32_b32 v1, -1, v1')
        A('    v_lshlrev_b32 v1, 2, v1')
        A('    s_lshl_b32 s58, s2, 3')
        A('    s_add_u32 s58, s58, s20')
        A('    s_lshl_b32 s58, s58, 8')
        A('    s_add_u32 s58, s58, 0x200000')
        A(f'    buffer_store_dword v{vTr}, v1, s[60:63], s58 offen')
    A('    s_endpgm')

    hF = 40
    hO = 24
    hM, hLs = 28, 29
    hS = 32
    hI = 16
    hJ = 20
    hD = 64
    NS = 2 * NW
    MBOX = 1152
    A('L_helper:')
    A('    s_load_dwordx2 s[32:33], s[0:1], 40')
    A('    s_load_dwordx2 s[40:41], s[0:1], 24')
    A('    v_mov_b32 v1, 0')
    A('    v_mov_b32 v2, 0')
    A('    v_mov_b32 v3, 0')
    A('    ds_write_b64 v1, v[2:3]')
    A('    s_mov_b32 s34, 0x20000000')
    A('    s_mov_b32 s35, 0x20000')
    A('    s_mov_b32 s42, 0x20000')
    A('    s_mov_b32 s43, 0x20000')
    A('    v_lshlrev_b32 v5, 4, v0')
    A('    v_lshlrev_b32 v6, 3, v0')
    A('    v_bfe_u32 v8, v0, 1, 2')
    A('    v_lshlrev_b32 v10, 4, v8')
    A('    s_lshl_b32 s45, s2, 11')
    A(f'    s_xor_b32 s46, s45, {2048<<PB}')
    A('    s_waitcnt lgkmcnt(0)')
    A('    s_barrier')
    def poll_loads():
        A(f'    buffer_load_dwordx4 {r(hI,4)}, v5, s[32:35], s45 offen sc1')
        A(f'    buffer_load_dwordx4 {r(hJ,4)}, v10, s[32:35], s45 offen offset:1024 sc1')
    if not nomsg:
        poll_loads()
    A(f'    v_add_u32 v7, {REG1}, v5')
    A('    v_lshlrev_b32 v8, 8, v8')
    A('    v_bfe_u32 v9, v0, 3, 1')
    A('    v_lshl_or_b32 v8, v9, 6, v8')
    A('    v_lshrrev_b32 v9, 4, v0')
    A('    v_lshl_or_b32 v8, v9, 2, v8')
    A('    v_and_b32 v9, 1, v0')
    A('    v_lshl_or_b32 v8, v9, 1, v8')
    A('    s_lshl_b32 s44, s31, 10')
    A('    s_lshl_b32 s22, s30, 7')
    A('    s_add_u32 s44, s44, s22')
    A('    s_mov_b32 s54, 0x05030201')
    A('    s_mov_b32 s55, 0x06050302')
    A('    s_mov_b32 s56, 0x07060503')
    A('    s_mov_b32 s57, 0x0504030c')
    A('    s_mov_b32 s59, 0x0403020c')
    nb = NLOOP // bar if bar else 0
    if bar2:
        nb += NLOOP + (PEEL if bar2 == 2 else 0)
    if nb:
        A('    s_barrier')
    if not nomsg:
        A('    s_waitcnt vmcnt(0)')
        A('    s_mov_b32 s47, 0')
        A('L_hnonce:')
        A('    s_add_u32 s47, s47, 1')
        A('    s_nop 0')
        A(f'    v_cmp_eq_u32 vcc, s47, v{hI+3}')
        A(f'    v_cmp_eq_u32 s[48:49], s47, v{hJ+3}')
        A('    s_nop 0')
        A('    s_or_b64 vcc, vcc, s[48:49]')
        A('    s_cbranch_scc1 L_hnonce')
        A(f'    v_mov_b32 v{hM+2}, s47')
        A('    s_mov_b64 exec, 1')
        A(f'    buffer_store_dword v{hM+2}, v1, s[32:35], s46 offen offset:{MBOX} sc1')
        A('    s_mov_b64 exec, -1')
    for k in range(nb - 1):
        A('    s_barrier')
    if not nomsg:
        A('    s_waitcnt vmcnt(0)')
        A(f'    buffer_load_dword v{hS+3}, v1, s[32:35], s45 offen offset:{MBOX} sc1')
    stamp(4)
    def reduce():
        PDS = 10
        for s in range(min(PDS, NS)):
            A(f'    ds_read_b128 {r(hD+4*s,4)}, v7 offset:{1024*s}')
        for s in range(NS):
            A(f'    s_waitcnt lgkmcnt({min(NS, s+PDS) - s - 1})')
            f = hF + 2*(s >> 1)
            for u in (0, 2):
                if s == 0:
                    A(f'    v_pk_mul_f32 {r(hO+u,2)}, {r(hD+u,2)}, {r(f,2)} op_sel_hi:[1,0]')
                else:
                    A(f'    v_pk_fma_f32 {r(hO+u,2)}, {r(hD+4*s+u,2)}, {r(f,2)}, {r(hO+u,2)} op_sel_hi:[1,0,1]')
            if s + PDS < NS:
                A(f'    ds_read_b128 {r(hD+4*(s+PDS),4)}, v7 offset:{1024*(s+PDS)}')
    def send():
        A(f'    buffer_store_dwordx4 {r(hS,4)}, v5, s[32:35], s46 offen sc1')
        A('    s_mov_b64 exec, 0x55')
        A(f'    buffer_store_dwordx4 {r(hM,4)}, v10, s[32:35], s46 offen offset:1024 sc1')
        A('    s_mov_b64 exec, -1')
    A('    s_mov_b32 s50, 0x400000')
    A('L_hpoll1:')
    A('    ds_read_b32 v12, v1')
    A('    s_waitcnt lgkmcnt(0)')
    A('    v_readfirstlane_b32 s22, v12')
    A('    s_sub_u32 s50, s50, 1')
    A('    s_cbranch_scc1 L_end')
    A(f'    s_cmp_ge_u32 s22, {NW}')
    A('    s_cbranch_scc1 L_hgo1')
    if hsl:
        A(f'    s_sleep {hsl}')
    A('    s_branch L_hpoll1')
    A('L_hgo1:')
    stamp(1)
    for w in range(NW):
        A(f'    ds_read_b64 {r(hD+2*w,2)}, v6 offset:{STATS+512*w}')
    A('    s_waitcnt lgkmcnt(0)')
    A(f'    v_max_f32 v{hM}, v{hD}, v{hD+2}')
    for w in range(2, NW, 2):
        A(f'    v_max3_f32 v{hM}, v{hM}, v{hD+2*w}, v{hD+2*w+2}')
    for w in range(NW):
        A(f'    v_sub_f32 v{hF+2*w}, v{hD+2*w}, v{hM}')
    for w in range(NW):
        A(f'    v_exp_f32 v{hF+2*w}, v{hF+2*w}')
    A('    s_nop 0')
    A(f'    v_mul_f32 v{hLs}, v{hF}, v{hD+1}')
    for w in range(1, NW):
        A(f'    v_fma_f32 v{hLs}, v{hF+2*w}, v{hD+2*w+1}, v{hLs}')
    A('    s_mov_b32 s51, 0')
    A('L_hred:')
    reduce()
    A('    s_cmp_eq_u32 s51, 0')
    A('    s_cbranch_scc0 L_hred_done')
    for k in range(4):
        A(f'    v_add_u32 v{hO+k}, 0x80, v{hO+k}')
    A(f'    v_perm_b32 v{hS}, v{hO+1}, v{hO}, s54')
    A(f'    v_perm_b32 v{hS+1}, v{hO+2}, v{hO+1}, s55')
    A(f'    v_perm_b32 v{hS+2}, v{hO+3}, v{hO+2}, s56')
    A(f'    v_add_u32 v7, {REG2-REG1}, v7')
    A('    s_mov_b32 s51, 1')
    A('    s_mov_b32 s50, 0x200000')
    if nomsg:
        A('    s_mov_b32 s53, 1')
        A('    s_branch L_hacc')
    A('    s_waitcnt vmcnt(0)')
    A(f'    v_mov_b32 v{hM+3}, v{hS+3}')
    send()
    stamp(2)
    A('    s_mov_b32 s53, 0')
    A('L_hmsg:')
    poll_loads()
    A('    s_sub_u32 s50, s50, 1')
    A('    s_cbranch_scc1 L_end')
    A('    s_waitcnt vmcnt(0)')
    A(f'    v_cmp_ne_u32 vcc, s47, v{hI+3}')
    A(f'    v_cmp_ne_u32 s[48:49], s47, v{hJ+3}')
    A('    s_nop 0')
    A('    s_or_b64 vcc, vcc, s[48:49]')
    A('    s_cbranch_scc0 L_hgot')
    if msl:
        A(f'    s_sleep {msl}')
    A('    s_cmp_eq_u32 s51, 2')
    A('    s_cbranch_scc1 L_hmsg')
    A('L_hacc:')
    A('    ds_read_b32 v12, v1 offset:4')
    A('    s_waitcnt lgkmcnt(0)')
    A('    v_readfirstlane_b32 s22, v12')
    A('    s_nop 0')
    A(f'    s_cmp_ge_u32 s22, {NW}')
    A('    s_cbranch_scc1 L_hacc_go')
    A('    s_cmp_eq_u32 s53, 0')
    A('    s_cbranch_scc1 L_hmsg')
    A('    s_sub_u32 s50, s50, 1')
    A('    s_cbranch_scc1 L_end')
    if hsl:
        A(f'    s_sleep {hsl}')
    A('    s_branch L_hacc')
    A('L_hacc_go:')
    stamp(5)
    A('    s_branch L_hred')
    A('L_hred_done:')
    A('    s_mov_b32 s51, 2')
    A('    s_cmp_eq_u32 s53, 0')
    A('    s_cbranch_scc1 L_hmsg')
    A('    s_branch L_hout')
    A('L_hgot:')
    stamp(3)
    A(f'    v_cmp_ne_u32 vcc, v{hJ+2}, v{hS+3}')
    A(f'    v_max_f32 v13, v{hM}, v{hJ}')
    A(f'    v_sub_f32 v14, v{hM}, v13')
    A(f'    v_sub_f32 v15, v{hJ}, v13')
    A('    v_exp_f32 v14, v14')
    A('    v_exp_f32 v15, v15')
    A('    s_cbranch_vccz L_hnoresend')
    A(f'    v_mov_b32 v{hS+3}, v{hJ+2}')
    A(f'    v_mov_b32 v{hM+3}, v{hJ+2}')
    send()
    A('L_hnoresend:')
    A(f'    v_mul_f32 v11, v14, v{hLs}')
    A(f'    v_fma_f32 v11, v15, v{hJ+1}, v11')
    A('    v_rcp_f32 v11, v11')
    A(f'    v_lshlrev_b32 v36, 8, v{hI}')
    A(f'    v_perm_b32 v37, v{hI+1}, v{hI}, s57')
    A(f'    v_perm_b32 v38, v{hI+2}, v{hI+1}, s59')
    A(f'    v_and_b32 v39, 0xffffff00, v{hI+2}')
    A('    v_mul_f32 v14, v14, v11')
    A('    v_mul_f32 v15, v15, v11')
    for k in range(4):
        A(f'    v_mul_f32 v{36+k}, v{36+k}, v15')
    A('    s_mov_b32 s53, 1')
    A('    s_cmp_eq_u32 s51, 2')
    A('    s_cbranch_scc0 L_hacc')
    A('L_hout:')
    for k in range(4):
        A(f'    v_fma_f32 v{hO+k}, v{hO+k}, v14, v{36+k}')
    for k in range(4):
        A(f'    v_cvt_pk_bf16_f32 v{hO+k}, v{hO+k}, v{hO+k}')
    for k in range(4):
        A(f'    buffer_store_short v{hO+k}, v8, s[40:43], s44 offen offset:{16*k} {of}')
    stamp(6)
    if stamps:
        A('    s_mov_b32 s80, 0')
        A('    s_sub_u32 s82, 0x200000, s50')
        A('    s_waitcnt vmcnt(0)')
    stamp(7)
    dump_stamps(10)
    if ls:
        A('    s_waitcnt vmcnt(0)')
    light()
    A('L_end:')
    A('    s_endpgm')
    if nocomp:
        a = L.index('L_loop:'); b = L.index('L_helper:')
        keep = ('s_', 'buffer_', 'L_', 'ds_add', 'v_mov_b32 v9, 0', 'v_mov_b32 v11, 1', 'v_mov_b32 v1, 0', 'v_mov_b32 v2, s64', 'v_mov_b32 v3, s66')
        L[a:b] = [x for x in L[a:b] if x.strip().startswith(keep) and not x.strip().startswith('s_nop')]
    if abl == 1:
        i = L.index('L_helper:'); L.insert(i + 1, '    s_endpgm')
    if abl == 2:
        L[:] = [x for x in L if 'buffer_store_short' not in x]
    if abl == 3:
        i = L.index('L_hred2:'); L.insert(i + 1, '    s_cmp_eq_u32 s49, 0'); L.insert(i + 2, '    s_cbranch_scc0 L_hout')
    NVT = max(NV, hD + 4*NS)
    A('.section .rodata,"a"')
    A('.p2align 6')
    A(f'.amdhsa_kernel {NAME}')
    A(f'  .amdhsa_next_free_vgpr {NVT}')
    A(f'  .amdhsa_next_free_sgpr {96 if (stamps or ls) else 64}')
    A(f'  .amdhsa_accum_offset {(NVT+3)//4*4}')
    A('  .amdhsa_group_segment_fixed_size 0')
    A('  .amdhsa_kernarg_size 48')
    A('  .amdhsa_user_sgpr_count 2')
    A('  .amdhsa_user_sgpr_kernarg_segment_ptr 1')
    A('  .amdhsa_system_sgpr_workgroup_id_x 1')
    A('.end_amdhsa_kernel')
    return '\n'.join(L) + '\n', (NW+1)*64, LDS

if __name__ == '__main__':
    import json
    cfg = json.loads(sys.argv[2]) if len(sys.argv) > 2 else {}
    s, blk, lds = gen(**cfg)
    open(sys.argv[1], 'w').write(s)
    print(blk, lds)
```

```python
import sys, struct, math

NAME = 'standalone__gqa_softmax__sampling_kernel'

HEADER = """; Kernarg layout for this problem (48 bytes, ptrs only, base s[0:1]):
"""


DOC = """;
;
"""

def f32bits(x):
    return struct.unpack('<I', struct.pack('<f', x))[0]

def gen(NW=4, X=8, G=1, kf='nt', vf='nt', stamps=0, msl=0, trace=0, PB=0, LA=3, early=1, hsl=1, nomsg=0, nocomp=0, of='', resend=1, bar=1, abl=0, ls=0, PDo=0, cf='sc1', cl=0, delay=0, XM=0, CLA=0, lazy=0, bar2=0, pin=0, pinb=0, wide=0, pre=0, al=0, prio=0, nib=1, ea=8, mim=1):
    n = 128 // NW
    NC = X // 2
    assert X % 2 == 0 and n % 2 == 0
    assert LA <= (3 if early else 4)
    assert not nib or bar
    PD = (PDo or n // X) if X else 0
    assert not X or (PD * X <= n and PD & (PD - 1) == 0 and PD >= 2)
    DS = n - PD * X
    def deferred(i):
        return bool(X) and i % PD == PD - 1 and i >= DS
    first_def = DS + PD - 1 if X else 0
    CLA = CLA or LA
    NB = min(NC, max(CLA, 4))
    PEEL = max(2, (CLA + 3) // 4 * 2)
    stride = G * NW * 4096
    KVB = 0x8000000
    STATS = 64
    REG1 = STATS + NW * 512
    REG2 = REG1 + NW * 2048
    SST = REG2 + NW * 2048
    LDS = SST + NW * X * 512
    C = f32bits(math.log2(math.e) if mim else 128 ** -0.5 * math.log2(math.e))
    SC = f32bits(128 ** -0.5)

    L = []
    A = L.append
    vK, vVo, vVm, vS, vEm = 1, 2, 3, 4, 5
    vMc, vL, vAl, vT, vMx, vT2 = 6, 7, 8, 9, 10, 11
    vS0, vS1, vP0, vP1 = 12, 13, 14, 15
    vSc = 16
    vX = 20
    vQ = 28
    vAO, vAM = 44, 60
    vR = 76
    vCX = vR + 64
    NV = vCX + 16 * NB
    vSt, vAwP = NV, NV + 1
    if pre:
        NV += 2
    vTr = NV
    if trace:
        NV += 1
    vAw = 0

    def r(b, k): return f'v[{b}:{b+k-1}]'

    def stamp(i):
        if stamps:
            A(f'    s_memrealtime s[{64+2*i}:{65+2*i}]')
            A('    s_waitcnt lgkmcnt(0)')
    def dump_stamps(cnt):
        if not stamps:
            return
        A('    s_load_dwordx2 s[60:61], s[0:1], 40')
        A('    s_mov_b32 s62, 0x20000000')
        A('    s_mov_b32 s63, 0x20000')
        A('    s_lshl_b32 s58, s2, 4')
        A('    s_add_u32 s58, s58, s20')
        A('    s_lshl_b32 s58, s58, 6')
        A('    s_add_u32 s58, s58, 0x100000')
        A('    s_mov_b64 exec, 1')
        A('    v_mov_b32 v1, 0')
        A('    s_waitcnt lgkmcnt(0)')
        for i in range(cnt):
            A(f'    v_mov_b32 v2, s{64+2*i}')
            A(f'    buffer_store_dword v2, v1, s[60:63], s58 offen offset:{4*i}')
    def light():
        if not ls:
            return
        A('    s_memrealtime s[66:67]')
        A('    s_load_dwordx2 s[60:61], s[0:1], 40')
        A('    s_mov_b32 s62, 0x20000000')
        A('    s_mov_b32 s63, 0x20000')
        A('    s_lshl_b32 s58, s2, 3')
        A('    s_add_u32 s58, s58, s20')
        A('    s_lshl_b32 s58, s58, 3')
        A('    s_add_u32 s58, s58, 0x300000')
        A('    s_mov_b64 exec, 1')
        A('    v_mov_b32 v1, 0')
        A('    s_waitcnt lgkmcnt(0)')
        A('    v_mov_b32 v2, s64')
        A('    v_mov_b32 v3, s66')
        A('    buffer_store_dwordx2 v[2:3], v1, s[60:63], s58 offen')
    def tr():
        if trace:
            A('    s_memrealtime s[90:91]')
            A('    s_waitcnt lgkmcnt(0)')
            A(f'    v_writelane_b32 v{vTr}, s90, m0')
            A('    s_add_u32 m0, m0, 1')

    Q = []
    def wait(tag):
        idx = max(i for i, t in enumerate(Q) if t == tag)
        A(f'    s_waitcnt vmcnt({len(Q) - 1 - idx})')
        del Q[:idx + 1]

    A(HEADER.rstrip())
    A(f'; @launch grid=(256,1,1) block=({(NW+1)*64},1,1) lds={LDS}')
    A(DOC.rstrip())
    A('.amdgcn_target "amdgcn-amd-amdhsa--gfx950"')
    A('.text')
    A(f'.globl {NAME}')
    A(f'.p2align {ea}')
    A(f'.type {NAME},@function')
    A(f'{NAME}:')
    A('    s_load_dwordx2 s[8:9], s[0:1], 8')
    A('    s_load_dwordx2 s[12:13], s[0:1], 16')
    A('    s_load_dwordx2 s[4:5], s[0:1], 0')
    A('    v_lshrrev_b32 v10, 6, v0')
    A('    v_and_b32 v0, 63, v0')
    A('    s_cmp_ge_u32 s2, 256')
    A('    v_readfirstlane_b32 s20, v10')
    A('    s_cbranch_scc1 L_end')
    stamp(0)
    if delay:
        A(f'    s_and_b32 s22, s2, {delay}')
        A('    s_cbranch_scc0 L_nodelay')
        A('    s_mov_b32 s22, 40')
        A('L_delay:')
        A('    s_sleep 64')
        A('    s_sub_u32 s22, s22, 1')
        A('    s_cbranch_scc0 L_delay')
        A('L_nodelay:')
    if ls or pin:
        A('    s_memrealtime s[64:65]')
    if XM == 1:
        A('    s_and_b32 s31, s2, 7')
        A('    s_lshl_b32 s31, s31, 4')
        A('    s_lshr_b32 s30, s2, 4')
        A('    s_or_b32 s31, s31, s30')
        A('    s_bfe_u32 s30, s2, 0x10003')
        PB = 3
    elif XM == 2:
        A('    s_bfe_u32 s31, s2, 0x20001')
        A('    s_lshl_b32 s31, s31, 5')
        A('    s_lshr_b32 s30, s2, 3')
        A('    s_or_b32 s31, s31, s30')
        A('    s_and_b32 s30, s2, 1')
    elif PB == 0:
        A('    s_lshr_b32 s31, s2, 1')
        A('    s_and_b32 s30, s2, 1')
    else:
        A(f'    s_lshr_b32 s31, s2, {PB+1}')
        A(f'    s_lshl_b32 s31, s31, {PB}')
        A(f'    s_and_b32 s30, s2, {(1<<PB)-1}')
        A('    s_or_b32 s31, s31, s30')
        A(f'    s_bfe_u32 s30, s2, {PB | (1<<16):#x}')
    A(f'    s_cmp_eq_u32 s20, {NW}')
    A('    s_cbranch_scc1 L_helper')
    A('    v_lshrrev_b32 v10, 4, v0')
    A('    v_lshlrev_b32 v1, 4, v10')
    A('    v_and_b32 v11, 1, v0')
    A('    v_lshl_or_b32 v1, v11, 8, v1')
    A('    v_bfe_u32 v11, v0, 1, 1')
    A('    v_lshl_or_b32 v1, v11, 11, v1')
    A('    v_bfe_u32 v11, v0, 2, 2')
    A('    v_lshl_or_b32 v1, v11, 9, v1')
    A(f'    s_mov_b32 s10, {KVB:#x}')
    A('    s_mov_b32 s11, 0x20000')
    A('    s_lshl_b32 s21, s31, 20')
    if G == 1:
        A('    s_lshl_b32 s22, s30, 19')
    else:
        A(f'    s_mul_i32 s22, s30, {NW*4096}')
    A('    s_add_u32 s21, s21, s22')
    A('    s_lshl_b32 s22, s20, 12')
    A('    s_add_u32 s21, s21, s22')
    A('    v_lshrrev_b32 v11, 3, v0')
    A('    v_lshlrev_b32 v3, 8, v11')
    A('    v_and_b32 v11, 7, v0')
    A('    v_lshl_or_b32 v3, v11, 4, v3')
    A('    s_lshl_b32 s22, s30, 7')
    A('    v_or_b32 v3, s22, v3')
    A('    v_xor_b32 v2, 0x80, v3')
    A(f'    s_mov_b32 s14, {KVB:#x}')
    A('    s_mov_b32 s15, 0x20000')
    A('    v_bfe_u32 v11, v0, 1, 2')
    A('    v_lshlrev_b32 v12, 4, v10')
    A('    v_lshl_or_b32 v12, v11, 8, v12')
    A('    s_lshl_b32 s22, s31, 10')
    A('    s_mov_b32 s6, 0x20000')
    A('    s_mov_b32 s7, 0x20000')
    A(f'    s_mov_b32 s18, {0 if deferred(1) else KVB:#x}')
    A('    s_mov_b32 s19, 0x20000')
    A(f'    s_add_u32 s23, s21, {first_def*stride}')
    A('    s_mov_b32 s53, s21')
    A('    s_waitcnt lgkmcnt(0)')
    stamp(4)

    def kreg(i): return vR + 32*(i & 1)
    def vreg(i): return vR + 32*(i & 1) + 16
    def creg(g): return vCX + 16*(g % NB)
    def issue(j, rolled=False):
        if not rolled and j >= 2*n:
            g = j - 2*n
            if g >= NC:
                return
            for t in range(2):
                for u in range(2):
                    A(f'    buffer_load_dwordx4 {r(creg(g)+8*t+4*u,4)}, v{vVm}, s[12:15], s23 offen offset:{2048*u} {vf}')
                    Q.append((j, 2*t+u))
                A(f'    s_add_u32 s23, s23, {stride*PD}')
            return
        i = j >> 1
        if j & 1 == 0:
            for k in range(4):
                A(f'    buffer_load_dwordx4 {r(kreg(i)+4*k,4)}, v{vK}, s[8:11], s21 offen offset:{64*k} {kf}')
                Q.append((j, k))
            A(f'    s_add_u32 s21, s21, {stride}')
        else:
            dyn = rolled and X and (i & 1) == 1
            for t in range(2):
                A(f'    buffer_load_dwordx4 {r(vreg(i)+8*t,4)}, v{vVo}, s[12:15], s53 offen offset:{2048*t} {vf}')
                Q.append((j, 2*t))
                if rolled or not deferred(i):
                    srd = 's[16:19]' if dyn else 's[12:15]'
                    A(f'    buffer_load_dwordx4 {r(vreg(i)+8*t+4,4)}, v{vVm}, {srd}, s53 offen offset:{2048*t} {vf}')
                    Q.append((j, 2*t+1))
            A(f'    s_add_u32 s53, s53, {stride}')
    issued = set()
    def issue_upto(s, rolled):
        if rolled:
            issue(s + LA, True)
            return
        for j in list(range(s + LA, min(s + LA, 2*n - 1) + 1)) + list(range(2*n, s + CLA + 1)):
            if j not in issued:
                issued.add(j)
                issue(j)
    def wait_slot(j):
        idx = max(i for i, t in enumerate(Q) if t[0] == j)
        A(f'    s_waitcnt vmcnt({len(Q) - 1 - idx})')
        del Q[:idx + 1]

    issue(0, True)
    A('    s_mov_b32 s16, s12')
    A('    s_mov_b32 s17, s13')
    for j in range(4):
        A(f'    buffer_load_dwordx4 {r(vQ+4*j,4)}, v12, s[4:7], s22 offen offset:{64*j}')
        Q.append((0, 4+j))
    for j in range(1, LA):
        issue(j, True)
    A(f'    s_mov_b32 s25, {C:#x}')
    if mim:
        A(f'    s_mov_b32 s55, {SC:#x}')
    A('    s_mov_b32 s26, 0xff00ff00')
    A('    s_mov_b32 s27, 0xff00ff00')
    A('    s_mov_b32 s28, 0x00ff00ff')
    A('    s_mov_b32 s29, 0xff00ff00')
    A('    v_and_b32 v11, 1, v0')
    A('    v_lshlrev_b32 v11, 4, v11')
    A('    v_mov_b32 v12, 0xffff')
    A(f'    v_lshlrev_b32 v{vEm}, v11, v12')
    A(f'    s_mul_i32 s52, s20, {X*512}')
    A(f'    s_add_u32 s52, s52, {SST}')
    A(f'    v_lshlrev_b32 v{vS}, 3, v0')
    A(f'    v_add_u32 v{vS}, s52, v{vS}')
    A(f'    v_mov_b32 v{vMc}, 0xff800000')
    A(f'    v_mov_b32 v{vL}, 0')
    for k in (1, 2, 5, 6):
        A(f'    v_mov_b32 v{vX+k}, 0')
    for k in range(32):
        A(f'    v_mov_b32 v{vAO+k}, 0')
    if pre:
        A(f'    s_lshl_b32 s22, s20, 9')
        A(f'    v_lshlrev_b32 v{vSt}, 3, v0')
        A(f'    v_add_u32 v{vSt}, s22, v{vSt}')
        A(f'    v_lshrrev_b32 v{vT}, 5, v0')
        A(f'    v_lshlrev_b32 v{vT}, 10, v{vT}')
        A(f'    v_bfe_u32 v{vT2}, v0, 4, 1')
        A(f'    v_lshl_or_b32 v{vT}, v{vT2}, 7, v{vT}')
        A(f'    v_and_b32 v{vT2}, 7, v0')
        A(f'    v_lshl_or_b32 v{vT}, v{vT2}, 4, v{vT}')
        A('    s_lshl_b32 s22, s20, 11')
        A(f'    v_add_u32 v{vAwP}, s22, v{vT}')
    if prio:
        A(f'    s_setprio {prio}')
    A('    s_mov_b32 s24, 0')
    if trace:
        A('    s_mov_b32 m0, 0')
        A(f'    v_mov_b32 v{vTr}, 0')
    if not nib:
        A('    s_barrier')

    def pv(acc, vb, xb):
        A(f'    v_mfma_f32_16x16x16_bf16 {r(acc,4)}, {r(vb,2)}, {r(xb,2)}, {r(acc,4)}')
        A(f'    v_mfma_f32_16x16x16_bf16 {r(acc+4,4)}, {r(vb,2)}, {r(xb+2,2)}, {r(acc+4,4)}')
        A(f'    v_mfma_f32_16x16x16_bf16 {r(acc+8,4)}, {r(vb+2,2)}, {r(xb,2)}, {r(acc+8,4)}')
        A(f'    v_mfma_f32_16x16x16_bf16 {r(acc+12,4)}, {r(vb+2,2)}, {r(xb+2,2)}, {r(acc+12,4)}')

    def xlane(op, v):
        A(f'    {op}_dpp v{v}, v{v}, v{v} row_ror:8 row_mask:0xf bank_mask:0xf')
        for sw in ('v_permlane16_swap_b32', 'v_permlane32_swap_b32'):
            A(f'    v_mov_b32 v{vT}, v{v}')
            A('    s_nop 1')
            A(f'    {sw} v{v}, v{vT}')
            A(f'    {op} v{v}, v{v}, v{vT}')

    def tile(i, rolled, own_now=True):
        kb, vb = kreg(i), vreg(i)
        wait_slot(2*i)
        if early:
            issue_upto(2*i, rolled)
        for j in range(4):
            c = '0' if j == 0 else r(vSc, 4)
            A(f'    v_mfma_f32_16x16x32_bf16 {r(vSc,4)}, {r(kb+4*j,4)}, {r(vQ+4*j,4)}, {c}')
        a0 = len(L)
        if not early:
            issue_upto(2*i, rolled)
        pad = 8 - (len(L) - a0)
        if pad > 0:
            A(f'    s_nop {pad-1}')
        A(f'    v_cndmask_b32 v{vS0}, v{vSc}, v{vSc+1}, s[26:27]')
        A(f'    v_cndmask_b32 v{vS1}, v{vSc+2}, v{vSc+3}, s[26:27]')
        if mim:
            for rnd in range(2):
                A(f'    v_cvt_pk_bf16_f32 v{vT}, v{vS0}, v{vS1}')
                A(f'    v_lshlrev_b32 v{vS0}, 16, v{vT}')
                A(f'    v_and_b32 v{vS1}, 0xffff0000, v{vT}')
                if rnd == 0:
                    A(f'    v_mul_f32 v{vS0}, s55, v{vS0}')
                    A(f'    v_mul_f32 v{vS1}, s55, v{vS1}')
        A(f'    v_max_f32 v{vMx}, v{vS0}, v{vS1}')
        if rolled and X and (i & 1) == 1:
            A(f'    ds_write_b64 v{vS}, {r(vS0,2)}')
            A(f'    v_add_u32 v{vS}, s30, v{vS}')
        elif not rolled and deferred(i):
            A(f'    ds_write_b64 v{vS}, {r(vS0,2)}')
            A(f'    v_add_u32 v{vS}, 512, v{vS}')
        else:
            A('    s_nop 1')
        if lazy:
            lbl = f'L_keep{len(L)}'
            A(f'    v_mul_f32 v{vT}, s25, v{vMx}')
            A(f'    v_cmp_gt_f32 vcc, v{vT}, v{vMc}')
            A(f'    s_cbranch_vccz {lbl}')
            xlane('v_max_f32', vMx)
            A(f'    v_mul_f32 v{vMx}, s25, v{vMx}')
            A(f'    v_max_f32 v{vMx}, v{vMc}, v{vMx}')
            A(f'    v_sub_f32 v{vAl}, v{vMc}, v{vMx}')
            A(f'    v_exp_f32 v{vAl}, v{vAl}')
            A(f'    v_mov_b32 v{vMc}, v{vMx}')
            A(f'    v_mul_f32 v{vL}, v{vL}, v{vAl}')
            for k in range(16):
                A(f'    v_pk_mul_f32 {r(vAO+2*k,2)}, {r(vAO+2*k,2)}, {r(vAl,2)} op_sel_hi:[1,0]')
            A(f'{lbl}:')
            A(f'    v_fma_f32 v{vP0}, v{vS0}, s25, -v{vMc}')
            A(f'    v_fma_f32 v{vP1}, v{vS1}, s25, -v{vMc}')
            A(f'    v_exp_f32 v{vP0}, v{vP0}')
            A(f'    v_exp_f32 v{vP1}, v{vP1}')
            A('    s_nop 0')
            A(f'    v_cvt_pk_bf16_f32 v{vT}, v{vP0}, v{vP0}')
            A(f'    v_cvt_pk_bf16_f32 v{vT2}, v{vP1}, v{vP1}')
            A(f'    v_add_f32 v{vL}, v{vL}, v{vP0}')
            A(f'    v_and_b32 v{vX}, v{vT}, v{vEm}')
            A(f'    v_and_b32 v{vX+3}, v{vT}, v{vEm}')
            A(f'    v_and_b32 v{vX+4}, v{vT2}, v{vEm}')
            A(f'    v_and_b32 v{vX+7}, v{vT2}, v{vEm}')
            A(f'    v_add_f32 v{vL}, v{vL}, v{vP1}')
        else:
            xlane('v_max_f32', vMx)
            A(f'    v_mul_f32 v{vMx}, s25, v{vMx}')
            A(f'    v_max_f32 v{vMx}, v{vMc}, v{vMx}')
            A(f'    v_sub_f32 v{vAl}, v{vMc}, v{vMx}')
            A(f'    v_fma_f32 v{vP0}, v{vS0}, s25, -v{vMx}')
            A(f'    v_fma_f32 v{vP1}, v{vS1}, s25, -v{vMx}')
            A(f'    v_exp_f32 v{vAl}, v{vAl}')
            A(f'    v_exp_f32 v{vP0}, v{vP0}')
            A(f'    v_exp_f32 v{vP1}, v{vP1}')
            A(f'    v_mov_b32 v{vMc}, v{vMx}')
            A(f'    v_fma_f32 v{vL}, v{vL}, v{vAl}, v{vP0}')
            A(f'    v_cvt_pk_bf16_f32 v{vT}, v{vP0}, v{vP0}')
            A(f'    v_cvt_pk_bf16_f32 v{vT2}, v{vP1}, v{vP1}')
            A(f'    v_add_f32 v{vL}, v{vL}, v{vP1}')
            A(f'    v_and_b32 v{vX}, v{vT}, v{vEm}')
            A(f'    v_and_b32 v{vX+3}, v{vT}, v{vEm}')
            A(f'    v_and_b32 v{vX+4}, v{vT2}, v{vEm}')
            A(f'    v_and_b32 v{vX+7}, v{vT2}, v{vEm}')
            for k in range(16):
                A(f'    v_pk_mul_f32 {r(vAO+2*k,2)}, {r(vAO+2*k,2)}, {r(vAl,2)} op_sel_hi:[1,0]')
        wait_slot(2*i + 1)
        tr()
        if early:
            issue_upto(2*i + 1, rolled)
        A('    s_nop 0')
        pv(vAO, vb, vX)
        if own_now:
            pv(vAM, vb+4, vX)
        pv(vAO, vb+8, vX+4)
        if own_now:
            pv(vAM, vb+12, vX+4)
        if not early:
            issue_upto(2*i + 1, rolled)

    idx = max(i for i, t in enumerate(Q) if t[0] == 0)
    A(f'    s_waitcnt vmcnt({len(Q) - 1 - idx})')
    stamp(1)
    Q[:] = [t for t in Q if not (t[0] == 0 and t[1] >= 4)]
    Q0 = list(Q)
    NLOOP = (n - PEEL) // 2
    vodd = [j >> 1 for j in range(LA, LA + 4) if j & 1 and (j >> 1) & 1][0]
    if al:
        A(f'    .p2align {al}')
    A('L_loop:')
    if X:
        H = PD // 2
        A(f'    s_add_u32 s22, s24, {vodd >> 1}')
        A(f'    s_and_b32 s54, s22, {H-1}')
        A(f'    s_cmp_lg_u32 s54, {H-1}')
        A(f'    s_cselect_b32 s18, {KVB:#x}, 0')
        if DS:
            A(f'    s_cmp_lt_u32 s22, {DS//2}')
            A(f'    s_cselect_b32 s18, {KVB:#x}, s18')
        A(f'    s_and_b32 s54, s24, {H-1}')
        A(f'    s_cmp_eq_u32 s54, {H-1}')
        A('    s_cselect_b32 s30, 512, 0')
        if DS:
            A(f'    s_cmp_lt_u32 s24, {DS//2}')
            A('    s_cselect_b32 s30, 0, s30')
    tile(0, True)
    if bar2:
        A('    s_barrier')
    tile(1, True)
    assert [(j - 4, k) for j, k in Q] == Q0, (Q, Q0)
    A('    s_add_u32 s24, s24, 1')
    if bar == 1:
        A('    s_barrier')
    elif bar:
        A(f'    s_and_b32 s22, s24, {bar-1}')
        A('    s_cbranch_scc1 L_nobar')
        A('    s_barrier')
        A('L_nobar:')
    A(f'    s_cmp_lt_u32 s24, {NLOOP}')
    A('    s_cbranch_scc1 L_loop')
    Q[:] = [(j + 2*(n - PEEL), k) for j, k in Q0]
    rolled_slots = set(j for j, k in Q)
    for i in range(n - PEEL, n):
        tile(i, False, own_now=(2*i + 1 in rolled_slots or not deferred(i)))
        if bar2 == 2:
            A('    s_barrier')
    xlane('v_add_f32', vL)
    if pre:
        A(f'    ds_write_b64 v{vSt}, {r(vMc,2)} offset:{STATS}')
        A(f'    v_add_u32 v{vS}, {-X*512}, v{vS}')
        vAw = vAwP
    else:
        A(f'    s_lshl_b32 s22, s20, 9')
        A(f'    v_lshlrev_b32 v{vT2}, 3, v0')
        A(f'    v_add_u32 v{vS}, s52, v{vT2}')
        A(f'    v_add_u32 v{vT2}, s22, v{vT2}')
        A(f'    ds_write_b64 v{vT2}, {r(vMc,2)} offset:{STATS}')
        A(f'    v_lshrrev_b32 v{vT}, 5, v0')
        A(f'    v_lshlrev_b32 v{vT}, 10, v{vT}')
        A(f'    v_bfe_u32 v{vT2}, v0, 4, 1')
        A(f'    v_lshl_or_b32 v{vT}, v{vT2}, 7, v{vT}')
        A(f'    v_and_b32 v{vT2}, 7, v0')
        A(f'    v_lshl_or_b32 v{vT}, v{vT2}, 4, v{vT}')
        A('    s_lshl_b32 s22, s20, 11')
        A(f'    v_add_u32 v{vAw}, s22, v{vT}')
    A(f'    v_mov_b32 v{vT}, 0')
    A(f'    v_mov_b32 v{vT2}, 1')
    def put_acc(acc, reg, cnt):
        A('    s_mov_b64 exec, s[28:29]')
        for q in range(4):
            A(f'    ds_write_b128 v{vAw}, {r(acc+4*q,4)} offset:{reg+256*q}')
        A('    s_mov_b64 exec, 1')
        A(f'    ds_add_u32 v{vT}, v{vT2} offset:{cnt}')
        A('    s_mov_b64 exec, -1')
    put_acc(vAO, REG1, 0)
    stamp(2)
    for k in range(4 if NC else 0):
        A(f'    v_mov_b32 v{vQ+4*k+1}, 0')
        A(f'    v_mov_b32 v{vQ+4*k+2}, 0')
    for g in range(NC):
        A(f'    ds_read_b64 {r(vSc,2)}, v{vS} offset:{1024*g}')
        A(f'    ds_read_b64 {r(vSc+2,2)}, v{vS} offset:{1024*g+512}')
        A('    s_waitcnt lgkmcnt(0)')
        for k in range(4):
            A(f'    v_fma_f32 v{vSc+k}, v{vSc+k}, s25, -v{vMc}')
        for k in range(4):
            A(f'    v_exp_f32 v{vSc+k}, v{vSc+k}')
        A('    s_nop 0')
        for k in range(4):
            A(f'    v_cvt_pk_bf16_f32 v{vSc+k}, v{vSc+k}, v{vSc+k}')
        for k in range(4):
            A(f'    v_and_b32 v{vQ+4*k}, v{vSc+k}, v{vEm}')
            A(f'    v_and_b32 v{vQ+4*k+3}, v{vSc+k}, v{vEm}')
        A('    s_nop 0')
        j = 2*n + g
        for k in range(4):
            if (j, k) in Q:
                idx = Q.index((j, k))
                A(f'    s_waitcnt vmcnt({len(Q) - 1 - idx})')
                del Q[:idx + 1]
            else:
                A('    s_nop 0')
            pv(vAM, creg(g) + 4*k, vQ + 4*k)
        tr()
        issue_upto(j, False)
    assert not Q
    if NC:
        A('    s_nop 6')
    put_acc(vAM, REG2, 4)
    stamp(3)
    dump_stamps(5)
    light()
    if trace:
        A('    s_mov_b64 exec, -1')
        A('    v_mbcnt_lo_u32_b32 v1, -1, 0')
        A('    v_mbcnt_hi_u32_b32 v1, -1, v1')
        A('    v_lshlrev_b32 v1, 2, v1')
        A('    s_lshl_b32 s58, s2, 3')
        A('    s_add_u32 s58, s58, s20')
        A('    s_lshl_b32 s58, s58, 8')
        A('    s_add_u32 s58, s58, 0x200000')
        A(f'    buffer_store_dword v{vTr}, v1, s[60:63], s58 offen')
    A('    s_endpgm')

    hF = 40
    hO = 24
    hM, hLs = 28, 29
    hS = 32
    hI = 16
    hJ = 20
    hD = 64
    NS = 2 * NW
    MBOX = 1152
    A('L_helper:')
    A('    s_load_dwordx2 s[32:33], s[0:1], 40')
    A('    s_load_dwordx2 s[40:41], s[0:1], 24')
    A('    v_mov_b32 v1, 0')
    A('    v_mov_b32 v2, 0')
    A('    v_mov_b32 v3, 0')
    A('    ds_write_b64 v1, v[2:3]')
    A('    s_mov_b32 s34, 0x20000000')
    A('    s_mov_b32 s35, 0x20000')
    A('    s_mov_b32 s42, 0x20000')
    A('    s_mov_b32 s43, 0x20000')
    A('    v_lshlrev_b32 v5, 4, v0')
    A('    v_lshlrev_b32 v6, 3, v0')
    A('    v_bfe_u32 v8, v0, 1, 2')
    A('    v_lshlrev_b32 v10, 4, v8')
    A('    s_lshl_b32 s45, s2, 11')
    A(f'    s_xor_b32 s46, s45, {2048<<PB}')
    A('    s_waitcnt lgkmcnt(0)')
    if not nib:
        A('    s_barrier')
    def poll_loads():
        A(f'    buffer_load_dwordx4 {r(hI,4)}, v5, s[32:35], s45 offen sc1')
        A(f'    buffer_load_dwordx4 {r(hJ,4)}, v10, s[32:35], s45 offen offset:1024 sc1')
    if pin:
        A('    s_load_dwordx2 s[36:37], s[0:1], 32')
        A('    s_mov_b32 s38, 256')
        A('    s_mov_b32 s39, 0x20000')
        A('    s_not_b32 s22, s64')
        A('    v_mov_b32 v13, s22')
        A('    s_waitcnt lgkmcnt(0)')
        A('    s_mov_b64 exec, 1')
        A('    buffer_atomic_umax v13, v1, s[36:39], 0 offen sc1')
        A('    s_mov_b64 exec, -1')
    if not nomsg:
        poll_loads()
    A(f'    v_add_u32 v7, {REG1}, v5')
    A('    v_lshlrev_b32 v8, 8, v8')
    A('    v_bfe_u32 v9, v0, 3, 1')
    A('    v_lshl_or_b32 v8, v9, 6, v8')
    if wide:
        A('    v_bfe_u32 v9, v0, 4, 1')
        A('    v_lshl_or_b32 v8, v9, 4, v8')
        A('    v_lshrrev_b32 v9, 5, v0')
        A('    v_lshl_or_b32 v8, v9, 3, v8')
        A('    v_and_b32 v9, 1, v0')
        A('    v_lshl_or_b32 v8, v9, 5, v8')
        A('    v_lshlrev_b32 v9, 4, v9')
        A('    v_mov_b32 v11, 0xffff')
        A('    v_lshlrev_b32 v9, v9, v11')
        A('    s_mov_b32 s60, 0xaaaaaaaa')
        A('    s_mov_b32 s61, 0xaaaaaaaa')
    else:
        A('    v_lshrrev_b32 v9, 4, v0')
        A('    v_lshl_or_b32 v8, v9, 2, v8')
        A('    v_and_b32 v9, 1, v0')
        A('    v_lshl_or_b32 v8, v9, 1, v8')
    A('    s_lshl_b32 s44, s31, 10')
    A('    s_lshl_b32 s22, s30, 7')
    A('    s_add_u32 s44, s44, s22')
    A('    s_mov_b32 s54, 0x05030201')
    A('    s_mov_b32 s55, 0x06050302')
    A('    s_mov_b32 s56, 0x07060503')
    A('    s_mov_b32 s57, 0x0504030c')
    A('    s_mov_b32 s59, 0x0403020c')
    nb = NLOOP // bar if bar else 0
    if bar2:
        nb += NLOOP + (PEEL if bar2 == 2 else 0)
    if nb:
        A('    s_barrier')
    if not nomsg:
        A('    s_waitcnt vmcnt(0)')
        A('    s_mov_b32 s47, 0')
        A('L_hnonce:')
        A('    s_add_u32 s47, s47, 1')
        A('    s_nop 0')
        A(f'    v_cmp_eq_u32 vcc, s47, v{hI+3}')
        A(f'    v_cmp_eq_u32 s[48:49], s47, v{hJ+3}')
        A('    s_nop 0')
        A('    s_or_b64 vcc, vcc, s[48:49]')
        A('    s_cbranch_scc1 L_hnonce')
        A(f'    v_mov_b32 v{hM+2}, s47')
        A('    s_mov_b64 exec, 1')
        A(f'    buffer_store_dword v{hM+2}, v1, s[32:35], s46 offen offset:{MBOX} sc1')
        A('    s_mov_b64 exec, -1')
    for k in range(nb - 1):
        A('    s_barrier')
    if not nomsg:
        A('    s_waitcnt vmcnt(0)')
        A(f'    buffer_load_dword v{hS+3}, v1, s[32:35], s45 offen offset:{MBOX} sc1')
    stamp(4)
    def pin_wait():
        A('    buffer_load_dword v13, v1, s[36:39], 0 offen sc1')
        A('    s_waitcnt vmcnt(0)')
        A('    v_readfirstlane_b32 s64, v13')
        A('    s_nop 3')
        A('    s_not_b32 s64, s64')
        A('L_pin:')
        A('    s_memrealtime s[66:67]')
        A('    s_waitcnt lgkmcnt(0)')
        A('    s_sub_u32 s22, s66, s64')
        A(f'    s_cmp_lt_u32 s22, {pin}')
        A('    s_cbranch_scc1 L_pin')
    def reduce():
        PDS = 10
        for s in range(min(PDS, NS)):
            A(f'    ds_read_b128 {r(hD+4*s,4)}, v7 offset:{1024*s}')
        for s in range(NS):
            A(f'    s_waitcnt lgkmcnt({min(NS, s+PDS) - s - 1})')
            f = hF + 2*(s >> 1)
            for u in (0, 2):
                if s == 0:
                    A(f'    v_pk_mul_f32 {r(hO+u,2)}, {r(hD+u,2)}, {r(f,2)} op_sel_hi:[1,0]')
                else:
                    A(f'    v_pk_fma_f32 {r(hO+u,2)}, {r(hD+4*s+u,2)}, {r(f,2)}, {r(hO+u,2)} op_sel_hi:[1,0,1]')
            if s + PDS < NS:
                A(f'    ds_read_b128 {r(hD+4*(s+PDS),4)}, v7 offset:{1024*(s+PDS)}')
    def send():
        A(f'    buffer_store_dwordx4 {r(hS,4)}, v5, s[32:35], s46 offen sc1')
        A('    s_mov_b64 exec, 0x55')
        A(f'    buffer_store_dwordx4 {r(hM,4)}, v10, s[32:35], s46 offen offset:1024 sc1')
        A('    s_mov_b64 exec, -1')
    A('    s_mov_b32 s50, 0x400000')
    A('L_hpoll1:')
    A('    ds_read_b32 v12, v1')
    A('    s_waitcnt lgkmcnt(0)')
    A('    v_readfirstlane_b32 s22, v12')
    A('    s_sub_u32 s50, s50, 1')
    A('    s_cbranch_scc1 L_end')
    A(f'    s_cmp_ge_u32 s22, {NW}')
    A('    s_cbranch_scc1 L_hgo1')
    if hsl:
        A(f'    s_sleep {hsl}')
    A('    s_branch L_hpoll1')
    A('L_hgo1:')
    stamp(1)
    for w in range(NW):
        A(f'    ds_read_b64 {r(hD+2*w,2)}, v6 offset:{STATS+512*w}')
    A('    s_waitcnt lgkmcnt(0)')
    A(f'    v_max_f32 v{hM}, v{hD}, v{hD+2}')
    for w in range(2, NW, 2):
        A(f'    v_max3_f32 v{hM}, v{hM}, v{hD+2*w}, v{hD+2*w+2}')
    for w in range(NW):
        A(f'    v_sub_f32 v{hF+2*w}, v{hD+2*w}, v{hM}')
    for w in range(NW):
        A(f'    v_exp_f32 v{hF+2*w}, v{hF+2*w}')
    A('    s_nop 0')
    A(f'    v_mul_f32 v{hLs}, v{hF}, v{hD+1}')
    for w in range(1, NW):
        A(f'    v_fma_f32 v{hLs}, v{hF+2*w}, v{hD+2*w+1}, v{hLs}')
    A('    s_mov_b32 s51, 0')
    A('L_hred:')
    reduce()
    A('    s_cmp_eq_u32 s51, 0')
    A('    s_cbranch_scc0 L_hred_done')
    for k in range(4):
        A(f'    v_add_u32 v{hO+k}, 0x80, v{hO+k}')
    A(f'    v_perm_b32 v{hS}, v{hO+1}, v{hO}, s54')
    A(f'    v_perm_b32 v{hS+1}, v{hO+2}, v{hO+1}, s55')
    A(f'    v_perm_b32 v{hS+2}, v{hO+3}, v{hO+2}, s56')
    A(f'    v_add_u32 v7, {REG2-REG1}, v7')
    A('    s_mov_b32 s51, 1')
    A('    s_mov_b32 s50, 0x200000')
    if nomsg:
        A('    s_mov_b32 s53, 1')
        A('    s_branch L_hacc')
    A('    s_waitcnt vmcnt(0)')
    A(f'    v_mov_b32 v{hM+3}, v{hS+3}')
    send()
    stamp(2)
    A('    s_mov_b32 s53, 0')
    A('L_hmsg:')
    poll_loads()
    A('    s_sub_u32 s50, s50, 1')
    A('    s_cbranch_scc1 L_end')
    A('    s_waitcnt vmcnt(0)')
    A(f'    v_cmp_ne_u32 vcc, s47, v{hI+3}')
    A(f'    v_cmp_ne_u32 s[48:49], s47, v{hJ+3}')
    A('    s_nop 0')
    A('    s_or_b64 vcc, vcc, s[48:49]')
    A('    s_cbranch_scc0 L_hgot')
    if msl:
        A(f'    s_sleep {msl}')
    A('    s_cmp_eq_u32 s51, 2')
    A('    s_cbranch_scc1 L_hmsg')
    A('L_hacc:')
    A('    ds_read_b32 v12, v1 offset:4')
    A('    s_waitcnt lgkmcnt(0)')
    A('    v_readfirstlane_b32 s22, v12')
    A('    s_nop 0')
    A(f'    s_cmp_ge_u32 s22, {NW}')
    A('    s_cbranch_scc1 L_hacc_go')
    A('    s_cmp_eq_u32 s53, 0')
    A('    s_cbranch_scc1 L_hmsg')
    A('    s_sub_u32 s50, s50, 1')
    A('    s_cbranch_scc1 L_end')
    if hsl:
        A(f'    s_sleep {hsl}')
    A('    s_branch L_hacc')
    A('L_hacc_go:')
    stamp(5)
    A('    s_branch L_hred')
    A('L_hred_done:')
    A('    s_mov_b32 s51, 2')
    A('    s_cmp_eq_u32 s53, 0')
    A('    s_cbranch_scc1 L_hmsg')
    A('    s_branch L_hout')
    A('L_hgot:')
    stamp(3)
    A(f'    v_cmp_ne_u32 vcc, v{hJ+2}, v{hS+3}')
    A(f'    v_max_f32 v13, v{hM}, v{hJ}')
    A(f'    v_sub_f32 v14, v{hM}, v13')
    A(f'    v_sub_f32 v15, v{hJ}, v13')
    A('    v_exp_f32 v14, v14')
    A('    v_exp_f32 v15, v15')
    A('    s_cbranch_vccz L_hnoresend')
    A(f'    v_mov_b32 v{hS+3}, v{hJ+2}')
    A(f'    v_mov_b32 v{hM+3}, v{hJ+2}')
    send()
    A('L_hnoresend:')
    A(f'    v_mul_f32 v11, v14, v{hLs}')
    A(f'    v_fma_f32 v11, v15, v{hJ+1}, v11')
    A('    v_rcp_f32 v11, v11')
    A(f'    v_lshlrev_b32 v36, 8, v{hI}')
    A(f'    v_perm_b32 v37, v{hI+1}, v{hI}, s57')
    A(f'    v_perm_b32 v38, v{hI+2}, v{hI+1}, s59')
    A(f'    v_and_b32 v39, 0xffffff00, v{hI+2}')
    A('    v_mul_f32 v14, v14, v11')
    A('    v_mul_f32 v15, v15, v11')
    for k in range(4):
        A(f'    v_mul_f32 v{36+k}, v{36+k}, v15')
    A('    s_mov_b32 s53, 1')
    A('    s_cmp_eq_u32 s51, 2')
    A('    s_cbranch_scc0 L_hacc')
    A('L_hout:')
    for k in range(4):
        A(f'    v_fma_f32 v{hO+k}, v{hO+k}, v14, v{36+k}')
    if pin and pinb:
        pin_wait()
    for k in range(4):
        A(f'    v_cvt_pk_bf16_f32 v{hO+k}, v{hO+k}, v{hO+k}')
    if wide:
        for k in range(4):
            A(f'    v_mov_b32_dpp v{36+k}, v{hO+k} quad_perm:[1,0,3,2] row_mask:0xf bank_mask:0xf')
        for k in range(4):
            A(f'    v_bfi_b32 v{hO+k}, v9, v{hO+k}, v{36+k}')
        A(f'    v_cndmask_b32 v{hO}, v{hO}, v{hO+2}, s[60:61]')
        A(f'    v_cndmask_b32 v{hO+1}, v{hO+1}, v{hO+3}, s[60:61]')
        A('    s_nop 1')
        A(f'    v_permlane16_swap_b32 v{hO}, v{hO+1}')
        A(f'    buffer_store_dwordx2 {r(hO,2)}, v8, s[40:43], s44 offen {of}')
    else:
        for k in range(4):
            A(f'    buffer_store_short v{hO+k}, v8, s[40:43], s44 offen offset:{16*k} {of}')
    if pin and not pinb:
        pin_wait()
    stamp(6)
    if stamps:
        A('    s_mov_b32 s80, 0')
        A('    s_sub_u32 s82, 0x200000, s50')
        A('    s_waitcnt vmcnt(0)')
    stamp(7)
    dump_stamps(10)
    if ls:
        A('    s_waitcnt vmcnt(0)')
    light()
    A('L_end:')
    A('    s_endpgm')
    if nocomp:
        a = L.index('L_loop:'); b = L.index('L_helper:')
        keep = ('s_', 'buffer_', 'L_', 'ds_add', 'v_mov_b32 v9, 0', 'v_mov_b32 v11, 1', 'v_mov_b32 v1, 0', 'v_mov_b32 v2, s64', 'v_mov_b32 v3, s66')
        L[a:b] = [x for x in L[a:b] if x.strip().startswith(keep) and not x.strip().startswith('s_nop')]
    if abl == 1:
        i = L.index('L_helper:'); L.insert(i + 1, '    s_endpgm')
    if abl == 2:
        L[:] = [x for x in L if 'buffer_store_short' not in x]
    if abl == 3:
        i = L.index('L_hred2:'); L.insert(i + 1, '    s_cmp_eq_u32 s49, 0'); L.insert(i + 2, '    s_cbranch_scc0 L_hout')
    NVT = max(NV, hD + 4*NS)
    A('.section .rodata,"a"')
    A('.p2align 6')
    A(f'.amdhsa_kernel {NAME}')
    A(f'  .amdhsa_next_free_vgpr {NVT}')
    A(f'  .amdhsa_next_free_sgpr {96 if (stamps or ls or pin) else 64}')
    A(f'  .amdhsa_accum_offset {(NVT+3)//4*4}')
    A('  .amdhsa_group_segment_fixed_size 0')
    A('  .amdhsa_kernarg_size 48')
    A('  .amdhsa_user_sgpr_count 2')
    A('  .amdhsa_user_sgpr_kernarg_segment_ptr 1')
    A('  .amdhsa_system_sgpr_workgroup_id_x 1')
    A('.end_amdhsa_kernel')
    return '\n'.join(L) + '\n', (NW+1)*64, LDS

if __name__ == '__main__':
    import json
    cfg = json.loads(sys.argv[2]) if len(sys.argv) > 2 else {}
    s, blk, lds = gen(**cfg)
    open(sys.argv[1], 'w').write(s)
    print(blk, lds)
```

```python
import sys, struct, math

NAME = 'standalone__gqa_softmax__sampling_kernel'

HEADER = """; Kernarg layout for this problem (48 bytes, ptrs only, base s[0:1]):
"""


DOC = """;
;
"""

def f32bits(x):
    return struct.unpack('<I', struct.pack('<f', x))[0]

def gen(NW=4, X=8, G=1, kf='nt', vf='nt', stamps=0, msl=0, trace=0, PB=0, LA=3, early=1, hsl=1, nomsg=0, nocomp=0, of='', resend=1, bar=1, abl=0, ls=0, PDo=0, cf='sc1', cl=0, delay=0, XM=0, CLA=0, lazy=0, bar2=0, pin=0, pinb=0, wide=0, pre=0, al=0, prio=0, nib=1, ea=8, mim=1, qf='', tf='sc1', sf='sc1', pf='sc1', kl=0, vq=0, ve=0, ke=(4, 4), kq=0, kd=2, vqq=0, km=(4, 4)):
    n = 128 // NW
    NC = X // 2
    assert X % 2 == 0 and n % 2 == 0
    assert LA <= (3 if early else 4)
    assert not nib or bar
    PD = (PDo or n // X) if X else 0
    assert not X or (PD * X <= n and PD & (PD - 1) == 0 and PD >= 2)
    DS = n - PD * X
    def deferred(i):
        return bool(X) and i % PD == PD - 1 and i >= DS
    first_def = DS + PD - 1 if X else 0
    CLA = CLA or LA
    NB = min(NC, max(CLA, 4))
    PEEL = max(2, (CLA + 3) // 4 * 2)
    stride = G * NW * 4096
    KVB = 0x8000000
    STATS = 64
    REG1 = STATS + NW * 512
    REG2 = REG1 + NW * 2048
    SST = REG2 + NW * 2048
    LDS = SST + NW * X * 512
    KLDS = LDS
    if kd:
        LDS += NW * (8192 if kd == 1 else 4096)
    C = f32bits(math.log2(math.e) if mim else 128 ** -0.5 * math.log2(math.e))
    SC = f32bits(128 ** -0.5)

    L = []
    A = L.append
    vK, vVo, vVm, vS, vEm = 1, 2, 3, 4, 5
    vMc, vL, vAl, vT, vMx, vT2 = 6, 7, 8, 9, 10, 11
    vS0, vS1, vP0, vP1 = 12, 13, 14, 15
    vSc = 16
    vX = 20
    vQ = 28
    vAO, vAM = 44, 60
    vR = 76
    vCX = vR + 64
    NV = vCX + 16 * NB
    vSt, vAwP = NV, NV + 1
    if pre:
        NV += 2
    vVe = NV
    if ve:
        NV += 1
    vKc = NV
    if tuple(ke) != (4, 4):
        NV += 1
    vKr = vR + 32
    vKw = NV + 1
    if kd == 2:
        vKr = NV
        NV += 2
    vKg, vKx, vKy = NV, NV + 1, NV + 2
    mixed = tuple(km) != (4, 4)
    if mixed:
        NV += 3
    vTr = NV
    if trace:
        NV += 1
    vAw = 0

    def r(b, k): return f'v[{b}:{b+k-1}]'

    def stamp(i):
        if stamps:
            A(f'    s_memrealtime s[{64+2*i}:{65+2*i}]')
            A('    s_waitcnt lgkmcnt(0)')
    def dump_stamps(cnt):
        if not stamps:
            return
        A('    s_load_dwordx2 s[60:61], s[0:1], 40')
        A('    s_mov_b32 s62, 0x20000000')
        A('    s_mov_b32 s63, 0x20000')
        A('    s_lshl_b32 s58, s2, 4')
        A('    s_add_u32 s58, s58, s20')
        A('    s_lshl_b32 s58, s58, 6')
        A('    s_add_u32 s58, s58, 0x100000')
        A('    s_mov_b64 exec, 1')
        A('    v_mov_b32 v1, 0')
        A('    s_waitcnt lgkmcnt(0)')
        for i in range(cnt):
            A(f'    v_mov_b32 v2, s{64+2*i}')
            A(f'    buffer_store_dword v2, v1, s[60:63], s58 offen offset:{4*i}')
    def light():
        if not ls:
            return
        A('    s_memrealtime s[66:67]')
        A('    s_memtime s[70:71]')
        A('    s_load_dwordx2 s[60:61], s[0:1], 40')
        A('    s_mov_b32 s62, 0x20000000')
        A('    s_mov_b32 s63, 0x20000')
        A('    s_lshl_b32 s58, s2, 3')
        A('    s_add_u32 s58, s58, s20')
        A('    s_lshl_b32 s58, s58, 3')
        A('    s_add_u32 s58, s58, 0x300000')
        A('    s_mov_b64 exec, 1')
        A('    v_mov_b32 v1, 0')
        A('    s_waitcnt lgkmcnt(0)')
        A('    v_mov_b32 v2, s64')
        A('    v_mov_b32 v3, s66')
        A('    buffer_store_dwordx2 v[2:3], v1, s[60:63], s58 offen')
        A('    s_sub_u32 s70, s70, s68')
        A('    s_add_u32 s58, s58, 0x10000')
        A('    v_mov_b32 v2, s70')
        A('    buffer_store_dword v2, v1, s[60:63], s58 offen')
    def tr():
        if trace:
            A('    s_memrealtime s[90:91]')
            A('    s_waitcnt lgkmcnt(0)')
            A(f'    v_writelane_b32 v{vTr}, s90, m0')
            A('    s_add_u32 m0, m0, 1')

    Q = []
    def wait(tag):
        idx = max(i for i, t in enumerate(Q) if t == tag)
        A(f'    s_waitcnt vmcnt({len(Q) - 1 - idx})')
        del Q[:idx + 1]

    A(HEADER.rstrip())
    A(f'; @launch grid=(256,1,1) block=({(NW+1)*64},1,1) lds={LDS}')
    A(DOC.rstrip())
    A('.amdgcn_target "amdgcn-amd-amdhsa--gfx950"')
    A('.text')
    A(f'.globl {NAME}')
    A(f'.p2align {ea}')
    A(f'.type {NAME},@function')
    A(f'{NAME}:')
    A('    s_load_dwordx2 s[8:9], s[0:1], 8')
    A('    s_load_dwordx2 s[12:13], s[0:1], 16')
    A('    s_load_dwordx2 s[4:5], s[0:1], 0')
    A('    v_lshrrev_b32 v10, 6, v0')
    A('    v_and_b32 v0, 63, v0')
    A('    s_cmp_ge_u32 s2, 256')
    A('    v_readfirstlane_b32 s20, v10')
    A('    s_cbranch_scc1 L_end')
    stamp(0)
    if delay:
        A(f'    s_and_b32 s22, s2, {delay}')
        A('    s_cbranch_scc0 L_nodelay')
        A('    s_mov_b32 s22, 40')
        A('L_delay:')
        A('    s_sleep 64')
        A('    s_sub_u32 s22, s22, 1')
        A('    s_cbranch_scc0 L_delay')
        A('L_nodelay:')
    if ls or pin:
        A('    s_memrealtime s[64:65]')
    if ls:
        A('    s_memtime s[68:69]')
    if XM == 1:
        A('    s_and_b32 s31, s2, 7')
        A('    s_lshl_b32 s31, s31, 4')
        A('    s_lshr_b32 s30, s2, 4')
        A('    s_or_b32 s31, s31, s30')
        A('    s_bfe_u32 s30, s2, 0x10003')
        PB = 3
    elif XM == 2:
        A('    s_bfe_u32 s31, s2, 0x20001')
        A('    s_lshl_b32 s31, s31, 5')
        A('    s_lshr_b32 s30, s2, 3')
        A('    s_or_b32 s31, s31, s30')
        A('    s_and_b32 s30, s2, 1')
    elif PB == 0:
        A('    s_lshr_b32 s31, s2, 1')
        A('    s_and_b32 s30, s2, 1')
    else:
        A(f'    s_lshr_b32 s31, s2, {PB+1}')
        A(f'    s_lshl_b32 s31, s31, {PB}')
        A(f'    s_and_b32 s30, s2, {(1<<PB)-1}')
        A('    s_or_b32 s31, s31, s30')
        A(f'    s_bfe_u32 s30, s2, {PB | (1<<16):#x}')
    A(f'    s_cmp_eq_u32 s20, {NW}')
    A('    s_cbranch_scc1 L_helper')
    if kd:
        A('    v_lshrrev_b32 v10, 4, v0')
        A('    v_lshlrev_b32 v1, 9, v10')
        A('    v_bfe_u32 v11, v0, 3, 1')
        A('    v_lshl_or_b32 v1, v11, 11, v1')
        A('    v_bfe_u32 v11, v0, 2, 1')
        A('    v_lshl_or_b32 v1, v11, 8, v1')
        A('    v_bfe_i32 v11, v0, 5, 1')
        A('    v_xor_b32 v11, v11, v0')
        A('    v_and_b32 v11, 3, v11')
        A('    v_lshl_or_b32 v1, v11, 4, v1')
        A(f'    s_lshl_b32 s56, s20, {13 if kd == 1 else 12}')
        A(f'    s_add_u32 s56, s56, {KLDS}')
        if mixed:
            A(f'    v_and_b32 v{vKg}, 15, v0')
            A(f'    v_lshlrev_b32 v{vKg}, 4, v{vKg}')
            A(f'    v_and_b32 v11, 0x80, v{vKg}')
            A(f'    v_add_u32 v{vKg}, v11, v{vKg}')
            A('    v_and_b32 v11, 1, v10')
            A(f'    v_lshl_or_b32 v{vKg}, v11, 11, v{vKg}')
            A('    v_lshrrev_b32 v11, 5, v0')
            A(f'    v_lshl_or_b32 v{vKg}, v11, 9, v{vKg}')
    else:
        A('    v_lshrrev_b32 v10, 4, v0')
        A('    v_lshlrev_b32 v1, 4, v10')
        A('    v_and_b32 v11, 1, v0')
        A('    v_lshl_or_b32 v1, v11, 8, v1')
        A('    v_bfe_u32 v11, v0, 1, 1')
        A('    v_lshl_or_b32 v1, v11, 11, v1')
        A('    v_bfe_u32 v11, v0, 2, 2')
        A('    v_lshl_or_b32 v1, v11, 9, v1')
    if kl:
        A('    v_lshlrev_b32 v1, 4, v0')
    A(f'    s_mov_b32 s10, {KVB:#x}')
    A('    s_mov_b32 s11, 0x20000')
    A('    s_lshl_b32 s21, s31, 20')
    if G == 1:
        A('    s_lshl_b32 s22, s30, 19')
    else:
        A(f'    s_mul_i32 s22, s30, {NW*4096}')
    A('    s_add_u32 s21, s21, s22')
    A('    s_lshl_b32 s22, s20, 12')
    A('    s_add_u32 s21, s21, s22')
    A('    v_lshrrev_b32 v11, 3, v0')
    A('    v_lshlrev_b32 v3, 8, v11')
    A('    v_and_b32 v11, 7, v0')
    A('    v_lshl_or_b32 v3, v11, 4, v3')
    if vqq:
        A('    v_lshrrev_b32 v11, 2, v0')
        A('    v_lshlrev_b32 v3, 8, v11')
        A('    v_and_b32 v11, 3, v0')
        A('    v_lshl_or_b32 v3, v11, 4, v3')
    if vq:
        A('    v_lshlrev_b32 v3, 9, v10')
        A('    v_and_b32 v11, 1, v0')
        A('    v_lshl_or_b32 v3, v11, 8, v3')
        A('    v_bfe_u32 v11, v0, 1, 3')
        A('    v_lshl_or_b32 v3, v11, 4, v3')
    if tuple(ke) != (4, 4):
        if kq:
            A(f'    v_lshrrev_b32 v11, 2, v0')
            A(f'    v_lshlrev_b32 v{vKc}, 8, v11')
            A(f'    v_and_b32 v11, 3, v0')
            A(f'    v_lshl_or_b32 v{vKc}, v11, 4, v{vKc}')
        else:
            A(f'    v_mov_b32 v{vKc}, v3')
    A('    s_lshl_b32 s22, s30, 7')
    A('    v_or_b32 v3, s22, v3')
    A('    v_xor_b32 v2, 0x80, v3')
    if vq == 2:
        A('    v_lshrrev_b32 v11, 3, v0')
        A('    v_lshlrev_b32 v3, 8, v11')
        A('    v_and_b32 v11, 7, v0')
        A('    v_lshl_or_b32 v3, v11, 4, v3')
        A('    v_or_b32 v3, s22, v3')
    if ve:
        A('    s_xor_b32 s22, s22, 0x80')
        A(f'    v_or_b32 v{vVe}, s22, v1')
    A(f'    s_mov_b32 s14, {KVB:#x}')
    A('    s_mov_b32 s15, 0x20000')
    A('    v_bfe_u32 v11, v0, 1, 2')
    A('    v_lshlrev_b32 v12, 4, v10')
    A('    v_lshl_or_b32 v12, v11, 8, v12')
    A('    s_lshl_b32 s22, s31, 10')
    A('    s_mov_b32 s6, 0x20000')
    A('    s_mov_b32 s7, 0x20000')
    A(f'    s_mov_b32 s18, {0 if deferred(1) else KVB:#x}')
    A('    s_mov_b32 s19, 0x20000')
    A(f'    s_add_u32 s23, s21, {first_def*stride}')
    A('    s_mov_b32 s53, s21')
    A('    s_waitcnt lgkmcnt(0)')
    stamp(4)

    def kreg(i): return vR + 32*(i & 1)
    def vreg(i): return vR + 32*(i & 1) + 16
    def creg(g): return vCX + 16*(g % NB)
    def issue(j, rolled=False):
        if not rolled and j >= 2*n:
            g = j - 2*n
            if g >= NC:
                return
            for t in range(2):
                for u in range(2):
                    A(f'    buffer_load_dwordx4 {r(creg(g)+8*t+4*u,4)}, v{vVm}, s[12:15], s23 offen offset:{(64 if vqq else 2048)*u} {vf}')
                    Q.append((j, 2*t+u))
                A(f'    s_add_u32 s23, s23, {stride*PD}')
            return
        i = j >> 1
        if j & 1 == 0:
            for k in range(4):
                e = ke[i & 1]
                if kd == 2 and k >= km[i & 1]:
                    A(f'    buffer_load_dwordx4 {r(kreg(i)+4*k,4)}, v{vKg}, s[8:11], s21 offen offset:{128*(k >> 1) + 1024*(k & 1)} {kf}')
                elif kd == 2:
                    A(f'    buffer_load_dwordx4 {r(kreg(i)+4*k,4)}, v{vK}, s[8:11], s21 offen offset:{64*k} {kf}')
                elif kd:
                    A(f'    s_add_u32 m0, s56, {(i & 1)*4096 + 960*k}')
                    A('    s_nop 0')
                    A(f'    buffer_load_dwordx4 v{vK}, s[8:11], s21 offen offset:{64*k} {kf} lds')
                elif k < e:
                    A(f'    buffer_load_dwordx4 {r(kreg(i)+4*k,4)}, v{vK}, s[8:11], s21 offen offset:{(1024 if kl else 64)*k} {kf}')
                elif kq:
                    A(f'    buffer_load_dwordx4 {r(kreg(i)+4*k,4)}, v{vKc}, s[8:11], s21 offen offset:{64*k} {kf}')
                else:
                    off = (128 if k >= 2 else 0) + 2048*(k & 1)
                    A(f'    buffer_load_dwordx4 {r(kreg(i)+4*k,4)}, v{vKc}, s[8:11], s21 offen offset:{off} {kf}')
                Q.append((j, k))
            A(f'    s_add_u32 s21, s21, {stride}')
        else:
            dyn = rolled and X and (i & 1) == 1
            for t in range(2):
                if ve == 2 or (ve == 1 and (i & 1) == 0):
                    A(f'    buffer_load_dwordx4 {r(vreg(i)+8*t,4)}, v{vVe}, s[12:15], s53 offen offset:{64*t} {vf}')
                else:
                    A(f'    buffer_load_dwordx4 {r(vreg(i)+8*t,4)}, v{vVo}, s[12:15], s53 offen offset:{(64 if vqq else 2048)*t} {vf}')
                Q.append((j, 2*t))
                if rolled or not deferred(i):
                    srd = 's[16:19]' if dyn else 's[12:15]'
                    A(f'    buffer_load_dwordx4 {r(vreg(i)+8*t+4,4)}, v{vVm}, {srd}, s53 offen offset:{(64 if vqq else 2048)*t} {vf}')
                    Q.append((j, 2*t+1))
            A(f'    s_add_u32 s53, s53, {stride}')
    issued = set()
    def issue_upto(s, rolled):
        if rolled:
            issue(s + LA, True)
            return
        for j in list(range(s + LA, min(s + LA, 2*n - 1) + 1)) + list(range(2*n, s + CLA + 1)):
            if j not in issued:
                issued.add(j)
                issue(j)
    def wait_slot(j):
        idx = max(i for i, t in enumerate(Q) if t[0] == j)
        A(f'    s_waitcnt vmcnt({len(Q) - 1 - idx})')
        del Q[:idx + 1]

    issue(0, True)
    A('    s_mov_b32 s16, s12')
    A('    s_mov_b32 s17, s13')
    for j in range(4):
        A(f'    buffer_load_dwordx4 {r(vQ+4*j,4)}, v12, s[4:7], s22 offen offset:{64*j} {qf}')
        Q.append((0, 4+j))
    for j in range(1, LA):
        issue(j, True)
    A(f'    s_mov_b32 s25, {C:#x}')
    if mim:
        A(f'    s_mov_b32 s55, {SC:#x}')
    A('    s_mov_b32 s26, 0xff00ff00')
    A('    s_mov_b32 s27, 0xff00ff00')
    A('    s_mov_b32 s28, 0x00ff00ff')
    A('    s_mov_b32 s29, 0xff00ff00')
    A('    v_and_b32 v11, 1, v0')
    A('    v_lshlrev_b32 v11, 4, v11')
    A('    v_mov_b32 v12, 0xffff')
    A(f'    v_lshlrev_b32 v{vEm}, v11, v12')
    A(f'    s_mul_i32 s52, s20, {X*512}')
    A(f'    s_add_u32 s52, s52, {SST}')
    A(f'    v_lshlrev_b32 v{vS}, 3, v0')
    A(f'    v_add_u32 v{vS}, s52, v{vS}')
    if kd:
        A(f'    v_bfe_i32 v{vKr}, v0, 3, 1')
        A(f'    v_xor_b32 v{vKr}, v{vKr}, v10')
        A(f'    v_and_b32 v{vKr}, 3, v{vKr}')
        A(f'    v_lshlrev_b32 v{vKr}, 4, v{vKr}')
        A('    v_and_b32 v11, 15, v0')
        A(f'    v_lshl_or_b32 v{vKr}, v11, 6, v{vKr}')
        A(f'    v_add_u32 v{vKr}, s56, v{vKr}')
        if kd == 2:
            A(f'    v_lshlrev_b32 v{vKw}, 4, v0')
            A(f'    v_add_u32 v{vKw}, s56, v{vKw}')
        if mixed:
            A('    v_lshrrev_b32 v11, 3, v0')
            A(f'    v_lshlrev_b32 v{vKx}, 6, v11')
            A('    v_and_b32 v11, 3, v0')
            A(f'    v_lshl_or_b32 v{vKx}, v11, 4, v{vKx}')
            A('    v_bfe_u32 v11, v0, 2, 1')
            A(f'    v_lshl_or_b32 v{vKx}, v11, 10, v{vKx}')
            A(f'    v_add_u32 v{vKx}, s56, v{vKx}')
            A(f'    v_xor_b32 v{vKy}, 48, v{vKx}')
    A(f'    v_mov_b32 v{vMc}, 0xff800000')
    A(f'    v_mov_b32 v{vL}, 0')
    for k in (1, 2, 5, 6):
        A(f'    v_mov_b32 v{vX+k}, 0')
    for k in range(32):
        A(f'    v_mov_b32 v{vAO+k}, 0')
    if pre:
        A(f'    s_lshl_b32 s22, s20, 9')
        A(f'    v_lshlrev_b32 v{vSt}, 3, v0')
        A(f'    v_add_u32 v{vSt}, s22, v{vSt}')
        A(f'    v_lshrrev_b32 v{vT}, 5, v0')
        A(f'    v_lshlrev_b32 v{vT}, 10, v{vT}')
        A(f'    v_bfe_u32 v{vT2}, v0, 4, 1')
        A(f'    v_lshl_or_b32 v{vT}, v{vT2}, 7, v{vT}')
        A(f'    v_and_b32 v{vT2}, 7, v0')
        A(f'    v_lshl_or_b32 v{vT}, v{vT2}, 4, v{vT}')
        A('    s_lshl_b32 s22, s20, 11')
        A(f'    v_add_u32 v{vAwP}, s22, v{vT}')
    if prio:
        A(f'    s_setprio {prio}')
    A('    s_mov_b32 s24, 0')
    if trace:
        A('    s_mov_b32 m0, 0')
        A(f'    v_mov_b32 v{vTr}, 0')
    if not nib:
        A('    s_barrier')

    def pv(acc, vb, xb):
        A(f'    v_mfma_f32_16x16x16_bf16 {r(acc,4)}, {r(vb,2)}, {r(xb,2)}, {r(acc,4)}')
        A(f'    v_mfma_f32_16x16x16_bf16 {r(acc+4,4)}, {r(vb,2)}, {r(xb+2,2)}, {r(acc+4,4)}')
        A(f'    v_mfma_f32_16x16x16_bf16 {r(acc+8,4)}, {r(vb+2,2)}, {r(xb,2)}, {r(acc+8,4)}')
        A(f'    v_mfma_f32_16x16x16_bf16 {r(acc+12,4)}, {r(vb+2,2)}, {r(xb+2,2)}, {r(acc+12,4)}')

    def xlane(op, v):
        A(f'    {op}_dpp v{v}, v{v}, v{v} row_ror:8 row_mask:0xf bank_mask:0xf')
        for sw in ('v_permlane16_swap_b32', 'v_permlane32_swap_b32'):
            A(f'    v_mov_b32 v{vT}, v{v}')
            A('    s_nop 1')
            A(f'    {sw} v{v}, v{vT}')
            A(f'    {op} v{v}, v{v}, v{vT}')

    def tile(i, rolled, own_now=True):
        kb, vb = kreg(i), vreg(i)
        wait_slot(2*i)
        if kd == 1:
            kb = vR
            for j in range(4):
                A(f'    ds_read_b128 {r(kb+4*j,4)}, v{vKr} offset:{(i & 1)*4096 + 1024*j}')
        if early:
            issue_upto(2*i, rolled)
        if kd == 2:
            for j in range(4):
                if j >= km[i & 1]:
                    A(f'    ds_write_b128 v{vKy if j & 1 else vKx}, {r(kb+4*j,4)} offset:{2048*(j >> 1) + 512*(j & 1)}')
                else:
                    A(f'    ds_write_b128 v{vKw}, {r(kb+4*j,4)} offset:{1024*j}')
            for j in range(4):
                A(f'    ds_read_b128 {r(kb+4*j,4)}, v{vKr} offset:{1024*j}')
        for j in range(4):
            c = '0' if j == 0 else r(vSc, 4)
            if kd:
                A(f'    s_waitcnt lgkmcnt({3-j})')
            A(f'    v_mfma_f32_16x16x32_bf16 {r(vSc,4)}, {r(kb+4*j,4)}, {r(vQ+4*j,4)}, {c}')
        a0 = len(L)
        if not early:
            issue_upto(2*i, rolled)
        pad = 8 - (len(L) - a0)
        if pad > 0:
            A(f'    s_nop {pad-1}')
        A(f'    v_cndmask_b32 v{vS0}, v{vSc}, v{vSc+1}, s[26:27]')
        A(f'    v_cndmask_b32 v{vS1}, v{vSc+2}, v{vSc+3}, s[26:27]')
        if mim:
            for rnd in range(2):
                A(f'    v_cvt_pk_bf16_f32 v{vT}, v{vS0}, v{vS1}')
                A(f'    v_lshlrev_b32 v{vS0}, 16, v{vT}')
                A(f'    v_and_b32 v{vS1}, 0xffff0000, v{vT}')
                if rnd == 0:
                    A(f'    v_mul_f32 v{vS0}, s55, v{vS0}')
                    A(f'    v_mul_f32 v{vS1}, s55, v{vS1}')
        A(f'    v_max_f32 v{vMx}, v{vS0}, v{vS1}')
        if rolled and X and (i & 1) == 1:
            A(f'    ds_write_b64 v{vS}, {r(vS0,2)}')
            A(f'    v_add_u32 v{vS}, s30, v{vS}')
        elif not rolled and deferred(i):
            A(f'    ds_write_b64 v{vS}, {r(vS0,2)}')
            A(f'    v_add_u32 v{vS}, 512, v{vS}')
        else:
            A('    s_nop 1')
        if lazy:
            lbl = f'L_keep{len(L)}'
            A(f'    v_mul_f32 v{vT}, s25, v{vMx}')
            A(f'    v_cmp_gt_f32 vcc, v{vT}, v{vMc}')
            A(f'    s_cbranch_vccz {lbl}')
            xlane('v_max_f32', vMx)
            A(f'    v_mul_f32 v{vMx}, s25, v{vMx}')
            A(f'    v_max_f32 v{vMx}, v{vMc}, v{vMx}')
            A(f'    v_sub_f32 v{vAl}, v{vMc}, v{vMx}')
            A(f'    v_exp_f32 v{vAl}, v{vAl}')
            A(f'    v_mov_b32 v{vMc}, v{vMx}')
            A(f'    v_mul_f32 v{vL}, v{vL}, v{vAl}')
            for k in range(16):
                A(f'    v_pk_mul_f32 {r(vAO+2*k,2)}, {r(vAO+2*k,2)}, {r(vAl,2)} op_sel_hi:[1,0]')
            A(f'{lbl}:')
            A(f'    v_fma_f32 v{vP0}, v{vS0}, s25, -v{vMc}')
            A(f'    v_fma_f32 v{vP1}, v{vS1}, s25, -v{vMc}')
            A(f'    v_exp_f32 v{vP0}, v{vP0}')
            A(f'    v_exp_f32 v{vP1}, v{vP1}')
            A('    s_nop 0')
            A(f'    v_cvt_pk_bf16_f32 v{vT}, v{vP0}, v{vP0}')
            A(f'    v_cvt_pk_bf16_f32 v{vT2}, v{vP1}, v{vP1}')
            A(f'    v_add_f32 v{vL}, v{vL}, v{vP0}')
            A(f'    v_and_b32 v{vX}, v{vT}, v{vEm}')
            A(f'    v_and_b32 v{vX+3}, v{vT}, v{vEm}')
            A(f'    v_and_b32 v{vX+4}, v{vT2}, v{vEm}')
            A(f'    v_and_b32 v{vX+7}, v{vT2}, v{vEm}')
            A(f'    v_add_f32 v{vL}, v{vL}, v{vP1}')
        else:
            xlane('v_max_f32', vMx)
            A(f'    v_mul_f32 v{vMx}, s25, v{vMx}')
            A(f'    v_max_f32 v{vMx}, v{vMc}, v{vMx}')
            A(f'    v_sub_f32 v{vAl}, v{vMc}, v{vMx}')
            A(f'    v_fma_f32 v{vP0}, v{vS0}, s25, -v{vMx}')
            A(f'    v_fma_f32 v{vP1}, v{vS1}, s25, -v{vMx}')
            A(f'    v_exp_f32 v{vAl}, v{vAl}')
            A(f'    v_exp_f32 v{vP0}, v{vP0}')
            A(f'    v_exp_f32 v{vP1}, v{vP1}')
            A(f'    v_mov_b32 v{vMc}, v{vMx}')
            A(f'    v_fma_f32 v{vL}, v{vL}, v{vAl}, v{vP0}')
            A(f'    v_cvt_pk_bf16_f32 v{vT}, v{vP0}, v{vP0}')
            A(f'    v_cvt_pk_bf16_f32 v{vT2}, v{vP1}, v{vP1}')
            A(f'    v_add_f32 v{vL}, v{vL}, v{vP1}')
            A(f'    v_and_b32 v{vX}, v{vT}, v{vEm}')
            A(f'    v_and_b32 v{vX+3}, v{vT}, v{vEm}')
            A(f'    v_and_b32 v{vX+4}, v{vT2}, v{vEm}')
            A(f'    v_and_b32 v{vX+7}, v{vT2}, v{vEm}')
            for k in range(16):
                A(f'    v_pk_mul_f32 {r(vAO+2*k,2)}, {r(vAO+2*k,2)}, {r(vAl,2)} op_sel_hi:[1,0]')
        wait_slot(2*i + 1)
        tr()
        if early:
            issue_upto(2*i + 1, rolled)
        A('    s_nop 0')
        pv(vAO, vb, vX)
        if own_now:
            pv(vAM, vb+4, vX)
        pv(vAO, vb+8, vX+4)
        if own_now:
            pv(vAM, vb+12, vX+4)
        if not early:
            issue_upto(2*i + 1, rolled)

    idx = max(i for i, t in enumerate(Q) if t[0] == 0)
    A(f'    s_waitcnt vmcnt({len(Q) - 1 - idx})')
    stamp(1)
    Q[:] = [t for t in Q if not (t[0] == 0 and t[1] >= 4)]
    Q0 = list(Q)
    NLOOP = (n - PEEL) // 2
    vodd = [j >> 1 for j in range(LA, LA + 4) if j & 1 and (j >> 1) & 1][0]
    if al:
        A(f'    .p2align {al}')
    A('L_loop:')
    if X:
        H = PD // 2
        A(f'    s_add_u32 s22, s24, {vodd >> 1}')
        A(f'    s_and_b32 s54, s22, {H-1}')
        A(f'    s_cmp_lg_u32 s54, {H-1}')
        A(f'    s_cselect_b32 s18, {KVB:#x}, 0')
        if DS:
            A(f'    s_cmp_lt_u32 s22, {DS//2}')
            A(f'    s_cselect_b32 s18, {KVB:#x}, s18')
        A(f'    s_and_b32 s54, s24, {H-1}')
        A(f'    s_cmp_eq_u32 s54, {H-1}')
        A('    s_cselect_b32 s30, 512, 0')
        if DS:
            A(f'    s_cmp_lt_u32 s24, {DS//2}')
            A('    s_cselect_b32 s30, 0, s30')
    tile(0, True)
    if bar2:
        A('    s_barrier')
    tile(1, True)
    assert [(j - 4, k) for j, k in Q] == Q0, (Q, Q0)
    A('    s_add_u32 s24, s24, 1')
    if bar == 1:
        A('    s_barrier')
    elif bar:
        A(f'    s_and_b32 s22, s24, {bar-1}')
        A('    s_cbranch_scc1 L_nobar')
        A('    s_barrier')
        A('L_nobar:')
    A(f'    s_cmp_lt_u32 s24, {NLOOP}')
    A('    s_cbranch_scc1 L_loop')
    Q[:] = [(j + 2*(n - PEEL), k) for j, k in Q0]
    rolled_slots = set(j for j, k in Q)
    for i in range(n - PEEL, n):
        tile(i, False, own_now=(2*i + 1 in rolled_slots or not deferred(i)))
        if bar2 == 2:
            A('    s_barrier')
    xlane('v_add_f32', vL)
    if pre:
        A(f'    ds_write_b64 v{vSt}, {r(vMc,2)} offset:{STATS}')
        A(f'    v_add_u32 v{vS}, {-X*512}, v{vS}')
        vAw = vAwP
    else:
        A(f'    s_lshl_b32 s22, s20, 9')
        A(f'    v_lshlrev_b32 v{vT2}, 3, v0')
        A(f'    v_add_u32 v{vS}, s52, v{vT2}')
        A(f'    v_add_u32 v{vT2}, s22, v{vT2}')
        A(f'    ds_write_b64 v{vT2}, {r(vMc,2)} offset:{STATS}')
        A(f'    v_lshrrev_b32 v{vT}, 5, v0')
        A(f'    v_lshlrev_b32 v{vT}, 10, v{vT}')
        A(f'    v_bfe_u32 v{vT2}, v0, 4, 1')
        A(f'    v_lshl_or_b32 v{vT}, v{vT2}, 7, v{vT}')
        A(f'    v_and_b32 v{vT2}, 7, v0')
        A(f'    v_lshl_or_b32 v{vT}, v{vT2}, 4, v{vT}')
        A('    s_lshl_b32 s22, s20, 11')
        A(f'    v_add_u32 v{vAw}, s22, v{vT}')
    A(f'    v_mov_b32 v{vT}, 0')
    A(f'    v_mov_b32 v{vT2}, 1')
    def put_acc(acc, reg, cnt):
        A('    s_mov_b64 exec, s[28:29]')
        for q in range(4):
            A(f'    ds_write_b128 v{vAw}, {r(acc+4*q,4)} offset:{reg+256*q}')
        A('    s_mov_b64 exec, 1')
        A(f'    ds_add_u32 v{vT}, v{vT2} offset:{cnt}')
        A('    s_mov_b64 exec, -1')
    put_acc(vAO, REG1, 0)
    stamp(2)
    for k in range(4 if NC else 0):
        A(f'    v_mov_b32 v{vQ+4*k+1}, 0')
        A(f'    v_mov_b32 v{vQ+4*k+2}, 0')
    for g in range(NC):
        A(f'    ds_read_b64 {r(vSc,2)}, v{vS} offset:{1024*g}')
        A(f'    ds_read_b64 {r(vSc+2,2)}, v{vS} offset:{1024*g+512}')
        A('    s_waitcnt lgkmcnt(0)')
        for k in range(4):
            A(f'    v_fma_f32 v{vSc+k}, v{vSc+k}, s25, -v{vMc}')
        for k in range(4):
            A(f'    v_exp_f32 v{vSc+k}, v{vSc+k}')
        A('    s_nop 0')
        for k in range(4):
            A(f'    v_cvt_pk_bf16_f32 v{vSc+k}, v{vSc+k}, v{vSc+k}')
        for k in range(4):
            A(f'    v_and_b32 v{vQ+4*k}, v{vSc+k}, v{vEm}')
            A(f'    v_and_b32 v{vQ+4*k+3}, v{vSc+k}, v{vEm}')
        A('    s_nop 0')
        j = 2*n + g
        for k in range(4):
            if (j, k) in Q:
                idx = Q.index((j, k))
                A(f'    s_waitcnt vmcnt({len(Q) - 1 - idx})')
                del Q[:idx + 1]
            else:
                A('    s_nop 0')
            pv(vAM, creg(g) + 4*k, vQ + 4*k)
        tr()
        issue_upto(j, False)
    assert not Q
    if NC:
        A('    s_nop 6')
    put_acc(vAM, REG2, 4)
    stamp(3)
    dump_stamps(5)
    light()
    if trace:
        A('    s_mov_b64 exec, -1')
        A('    v_mbcnt_lo_u32_b32 v1, -1, 0')
        A('    v_mbcnt_hi_u32_b32 v1, -1, v1')
        A('    v_lshlrev_b32 v1, 2, v1')
        A('    s_lshl_b32 s58, s2, 3')
        A('    s_add_u32 s58, s58, s20')
        A('    s_lshl_b32 s58, s58, 8')
        A('    s_add_u32 s58, s58, 0x200000')
        A(f'    buffer_store_dword v{vTr}, v1, s[60:63], s58 offen')
    A('    s_endpgm')

    hF = 40
    hO = 24
    hM, hLs = 28, 29
    hS = 32
    hI = 16
    hJ = 20
    hD = 64
    NS = 2 * NW
    MBOX = 1152
    A('L_helper:')
    A('    s_load_dwordx2 s[32:33], s[0:1], 40')
    A('    s_load_dwordx2 s[40:41], s[0:1], 24')
    A('    v_mov_b32 v1, 0')
    A('    v_mov_b32 v2, 0')
    A('    v_mov_b32 v3, 0')
    A('    ds_write_b64 v1, v[2:3]')
    A('    s_mov_b32 s34, 0x20000000')
    A('    s_mov_b32 s35, 0x20000')
    A('    s_mov_b32 s42, 0x20000')
    A('    s_mov_b32 s43, 0x20000')
    A('    v_lshlrev_b32 v5, 4, v0')
    A('    v_lshlrev_b32 v6, 3, v0')
    A('    v_bfe_u32 v8, v0, 1, 2')
    A('    v_lshlrev_b32 v10, 4, v8')
    A('    s_lshl_b32 s45, s2, 11')
    A(f'    s_xor_b32 s46, s45, {2048<<PB}')
    A('    s_waitcnt lgkmcnt(0)')
    if not nib:
        A('    s_barrier')
    def poll_loads(fl=pf):
        A(f'    buffer_load_dwordx4 {r(hI,4)}, v5, s[32:35], s45 offen {fl}')
        A(f'    buffer_load_dwordx4 {r(hJ,4)}, v10, s[32:35], s45 offen offset:1024 {fl}')
    if pin:
        A('    s_load_dwordx2 s[36:37], s[0:1], 32')
        A('    s_mov_b32 s38, 256')
        A('    s_mov_b32 s39, 0x20000')
        A('    s_not_b32 s22, s64')
        A('    v_mov_b32 v13, s22')
        A('    s_waitcnt lgkmcnt(0)')
        A('    s_mov_b64 exec, 1')
        A('    buffer_atomic_umax v13, v1, s[36:39], 0 offen sc1')
        A('    s_mov_b64 exec, -1')
    if not nomsg:
        poll_loads(tf)
    A(f'    v_add_u32 v7, {REG1}, v5')
    A('    v_lshlrev_b32 v8, 8, v8')
    A('    v_bfe_u32 v9, v0, 3, 1')
    A('    v_lshl_or_b32 v8, v9, 6, v8')
    if wide:
        A('    v_bfe_u32 v9, v0, 4, 1')
        A('    v_lshl_or_b32 v8, v9, 4, v8')
        A('    v_lshrrev_b32 v9, 5, v0')
        A('    v_lshl_or_b32 v8, v9, 3, v8')
        A('    v_and_b32 v9, 1, v0')
        A('    v_lshl_or_b32 v8, v9, 5, v8')
        A('    v_lshlrev_b32 v9, 4, v9')
        A('    v_mov_b32 v11, 0xffff')
        A('    v_lshlrev_b32 v9, v9, v11')
        A('    s_mov_b32 s60, 0xaaaaaaaa')
        A('    s_mov_b32 s61, 0xaaaaaaaa')
    else:
        A('    v_lshrrev_b32 v9, 4, v0')
        A('    v_lshl_or_b32 v8, v9, 2, v8')
        A('    v_and_b32 v9, 1, v0')
        A('    v_lshl_or_b32 v8, v9, 1, v8')
    A('    s_lshl_b32 s44, s31, 10')
    A('    s_lshl_b32 s22, s30, 7')
    A('    s_add_u32 s44, s44, s22')
    A('    s_mov_b32 s54, 0x05030201')
    A('    s_mov_b32 s55, 0x06050302')
    A('    s_mov_b32 s56, 0x07060503')
    A('    s_mov_b32 s57, 0x0504030c')
    A('    s_mov_b32 s59, 0x0403020c')
    nb = NLOOP // bar if bar else 0
    if bar2:
        nb += NLOOP + (PEEL if bar2 == 2 else 0)
    if nb:
        A('    s_barrier')
    if not nomsg:
        A('    s_waitcnt vmcnt(0)')
        A('    s_mov_b32 s47, 0')
        A('L_hnonce:')
        A('    s_add_u32 s47, s47, 1')
        A('    s_nop 0')
        A(f'    v_cmp_eq_u32 vcc, s47, v{hI+3}')
        A(f'    v_cmp_eq_u32 s[48:49], s47, v{hJ+3}')
        A('    s_nop 0')
        A('    s_or_b64 vcc, vcc, s[48:49]')
        A('    s_cbranch_scc1 L_hnonce')
        A(f'    v_mov_b32 v{hM+2}, s47')
        A('    s_mov_b64 exec, 1')
        A(f'    buffer_store_dword v{hM+2}, v1, s[32:35], s46 offen offset:{MBOX} sc1')
        A('    s_mov_b64 exec, -1')
    for k in range(nb - 1):
        A('    s_barrier')
    if not nomsg:
        A('    s_waitcnt vmcnt(0)')
        A(f'    buffer_load_dword v{hS+3}, v1, s[32:35], s45 offen offset:{MBOX} sc1')
    stamp(4)
    def pin_wait():
        A('    buffer_load_dword v13, v1, s[36:39], 0 offen sc1')
        A('    s_waitcnt vmcnt(0)')
        A('    v_readfirstlane_b32 s64, v13')
        A('    s_nop 3')
        A('    s_not_b32 s64, s64')
        A('L_pin:')
        A('    s_memrealtime s[66:67]')
        A('    s_waitcnt lgkmcnt(0)')
        A('    s_sub_u32 s22, s66, s64')
        A(f'    s_cmp_lt_u32 s22, {pin}')
        A('    s_cbranch_scc1 L_pin')
    def reduce():
        PDS = 10
        for s in range(min(PDS, NS)):
            A(f'    ds_read_b128 {r(hD+4*s,4)}, v7 offset:{1024*s}')
        for s in range(NS):
            A(f'    s_waitcnt lgkmcnt({min(NS, s+PDS) - s - 1})')
            f = hF + 2*(s >> 1)
            for u in (0, 2):
                if s == 0:
                    A(f'    v_pk_mul_f32 {r(hO+u,2)}, {r(hD+u,2)}, {r(f,2)} op_sel_hi:[1,0]')
                else:
                    A(f'    v_pk_fma_f32 {r(hO+u,2)}, {r(hD+4*s+u,2)}, {r(f,2)}, {r(hO+u,2)} op_sel_hi:[1,0,1]')
            if s + PDS < NS:
                A(f'    ds_read_b128 {r(hD+4*(s+PDS),4)}, v7 offset:{1024*(s+PDS)}')
    def send():
        A(f'    buffer_store_dwordx4 {r(hS,4)}, v5, s[32:35], s46 offen {sf}')
        A('    s_mov_b64 exec, 0x55')
        A(f'    buffer_store_dwordx4 {r(hM,4)}, v10, s[32:35], s46 offen offset:1024 {sf}')
        A('    s_mov_b64 exec, -1')
    A('    s_mov_b32 s50, 0x400000')
    A('L_hpoll1:')
    A('    ds_read_b32 v12, v1')
    A('    s_waitcnt lgkmcnt(0)')
    A('    v_readfirstlane_b32 s22, v12')
    A('    s_sub_u32 s50, s50, 1')
    A('    s_cbranch_scc1 L_end')
    A(f'    s_cmp_ge_u32 s22, {NW}')
    A('    s_cbranch_scc1 L_hgo1')
    if hsl:
        A(f'    s_sleep {hsl}')
    A('    s_branch L_hpoll1')
    A('L_hgo1:')
    stamp(1)
    for w in range(NW):
        A(f'    ds_read_b64 {r(hD+2*w,2)}, v6 offset:{STATS+512*w}')
    A('    s_waitcnt lgkmcnt(0)')
    A(f'    v_max_f32 v{hM}, v{hD}, v{hD+2}')
    for w in range(2, NW, 2):
        A(f'    v_max3_f32 v{hM}, v{hM}, v{hD+2*w}, v{hD+2*w+2}')
    for w in range(NW):
        A(f'    v_sub_f32 v{hF+2*w}, v{hD+2*w}, v{hM}')
    for w in range(NW):
        A(f'    v_exp_f32 v{hF+2*w}, v{hF+2*w}')
    A('    s_nop 0')
    A(f'    v_mul_f32 v{hLs}, v{hF}, v{hD+1}')
    for w in range(1, NW):
        A(f'    v_fma_f32 v{hLs}, v{hF+2*w}, v{hD+2*w+1}, v{hLs}')
    A('    s_mov_b32 s51, 0')
    A('L_hred:')
    reduce()
    A('    s_cmp_eq_u32 s51, 0')
    A('    s_cbranch_scc0 L_hred_done')
    for k in range(4):
        A(f'    v_add_u32 v{hO+k}, 0x80, v{hO+k}')
    A(f'    v_perm_b32 v{hS}, v{hO+1}, v{hO}, s54')
    A(f'    v_perm_b32 v{hS+1}, v{hO+2}, v{hO+1}, s55')
    A(f'    v_perm_b32 v{hS+2}, v{hO+3}, v{hO+2}, s56')
    A(f'    v_add_u32 v7, {REG2-REG1}, v7')
    A('    s_mov_b32 s51, 1')
    A('    s_mov_b32 s50, 0x200000')
    if nomsg:
        A('    s_mov_b32 s53, 1')
        A('    s_branch L_hacc')
    A('    s_waitcnt vmcnt(0)')
    A(f'    v_mov_b32 v{hM+3}, v{hS+3}')
    send()
    stamp(2)
    A('    s_mov_b32 s53, 0')
    A('L_hmsg:')
    poll_loads()
    A('    s_sub_u32 s50, s50, 1')
    A('    s_cbranch_scc1 L_end')
    A('    s_waitcnt vmcnt(0)')
    A(f'    v_cmp_ne_u32 vcc, s47, v{hI+3}')
    A(f'    v_cmp_ne_u32 s[48:49], s47, v{hJ+3}')
    A('    s_nop 0')
    A('    s_or_b64 vcc, vcc, s[48:49]')
    A('    s_cbranch_scc0 L_hgot')
    if msl:
        A(f'    s_sleep {msl}')
    A('    s_cmp_eq_u32 s51, 2')
    A('    s_cbranch_scc1 L_hmsg')
    A('L_hacc:')
    A('    ds_read_b32 v12, v1 offset:4')
    A('    s_waitcnt lgkmcnt(0)')
    A('    v_readfirstlane_b32 s22, v12')
    A('    s_nop 0')
    A(f'    s_cmp_ge_u32 s22, {NW}')
    A('    s_cbranch_scc1 L_hacc_go')
    A('    s_cmp_eq_u32 s53, 0')
    A('    s_cbranch_scc1 L_hmsg')
    A('    s_sub_u32 s50, s50, 1')
    A('    s_cbranch_scc1 L_end')
    if hsl:
        A(f'    s_sleep {hsl}')
    A('    s_branch L_hacc')
    A('L_hacc_go:')
    stamp(5)
    A('    s_branch L_hred')
    A('L_hred_done:')
    A('    s_mov_b32 s51, 2')
    A('    s_cmp_eq_u32 s53, 0')
    A('    s_cbranch_scc1 L_hmsg')
    A('    s_branch L_hout')
    A('L_hgot:')
    stamp(3)
    A(f'    v_cmp_ne_u32 vcc, v{hJ+2}, v{hS+3}')
    A(f'    v_max_f32 v13, v{hM}, v{hJ}')
    A(f'    v_sub_f32 v14, v{hM}, v13')
    A(f'    v_sub_f32 v15, v{hJ}, v13')
    A('    v_exp_f32 v14, v14')
    A('    v_exp_f32 v15, v15')
    A('    s_cbranch_vccz L_hnoresend')
    A(f'    v_mov_b32 v{hS+3}, v{hJ+2}')
    A(f'    v_mov_b32 v{hM+3}, v{hJ+2}')
    send()
    A('L_hnoresend:')
    A(f'    v_mul_f32 v11, v14, v{hLs}')
    A(f'    v_fma_f32 v11, v15, v{hJ+1}, v11')
    A('    v_rcp_f32 v11, v11')
    A(f'    v_lshlrev_b32 v36, 8, v{hI}')
    A(f'    v_perm_b32 v37, v{hI+1}, v{hI}, s57')
    A(f'    v_perm_b32 v38, v{hI+2}, v{hI+1}, s59')
    A(f'    v_and_b32 v39, 0xffffff00, v{hI+2}')
    A('    v_mul_f32 v14, v14, v11')
    A('    v_mul_f32 v15, v15, v11')
    for k in range(4):
        A(f'    v_mul_f32 v{36+k}, v{36+k}, v15')
    A('    s_mov_b32 s53, 1')
    A('    s_cmp_eq_u32 s51, 2')
    A('    s_cbranch_scc0 L_hacc')
    A('L_hout:')
    for k in range(4):
        A(f'    v_fma_f32 v{hO+k}, v{hO+k}, v14, v{36+k}')
    if pin and pinb:
        pin_wait()
    for k in range(4):
        A(f'    v_cvt_pk_bf16_f32 v{hO+k}, v{hO+k}, v{hO+k}')
    if wide:
        for k in range(4):
            A(f'    v_mov_b32_dpp v{36+k}, v{hO+k} quad_perm:[1,0,3,2] row_mask:0xf bank_mask:0xf')
        for k in range(4):
            A(f'    v_bfi_b32 v{hO+k}, v9, v{hO+k}, v{36+k}')
        A(f'    v_cndmask_b32 v{hO}, v{hO}, v{hO+2}, s[60:61]')
        A(f'    v_cndmask_b32 v{hO+1}, v{hO+1}, v{hO+3}, s[60:61]')
        A('    s_nop 1')
        A(f'    v_permlane16_swap_b32 v{hO}, v{hO+1}')
        A(f'    buffer_store_dwordx2 {r(hO,2)}, v8, s[40:43], s44 offen {of}')
    else:
        for k in range(4):
            A(f'    buffer_store_short v{hO+k}, v8, s[40:43], s44 offen offset:{16*k} {of}')
    if pin and not pinb:
        pin_wait()
    stamp(6)
    if stamps:
        A('    s_mov_b32 s80, 0')
        A('    s_sub_u32 s82, 0x200000, s50')
        A('    s_waitcnt vmcnt(0)')
    stamp(7)
    dump_stamps(10)
    if ls:
        A('    s_waitcnt vmcnt(0)')
    light()
    A('L_end:')
    A('    s_endpgm')
    if nocomp:
        a = L.index('L_loop:'); b = L.index('L_helper:')
        keep = ('s_', 'buffer_', 'L_', 'ds_add', 'v_mov_b32 v9, 0', 'v_mov_b32 v11, 1', 'v_mov_b32 v1, 0', 'v_mov_b32 v2, s64', 'v_mov_b32 v3, s66', 'v_mov_b32 v2, s70')
        L[a:b] = [x for x in L[a:b] if x.strip().startswith(keep) and not x.strip().startswith('s_nop')]
    if abl == 1:
        i = L.index('L_helper:'); L.insert(i + 1, '    s_endpgm')
    if abl == 2:
        L[:] = [x for x in L if 'buffer_store_short' not in x]
    if abl == 3:
        i = L.index('L_hred2:'); L.insert(i + 1, '    s_cmp_eq_u32 s49, 0'); L.insert(i + 2, '    s_cbranch_scc0 L_hout')
    NVT = max(NV, hD + 4*NS)
    A('.section .rodata,"a"')
    A('.p2align 6')
    A(f'.amdhsa_kernel {NAME}')
    A(f'  .amdhsa_next_free_vgpr {NVT}')
    A(f'  .amdhsa_next_free_sgpr {96 if (stamps or ls or pin) else 64}')
    A(f'  .amdhsa_accum_offset {(NVT+3)//4*4}')
    A('  .amdhsa_group_segment_fixed_size 0')
    A('  .amdhsa_kernarg_size 48')
    A('  .amdhsa_user_sgpr_count 2')
    A('  .amdhsa_user_sgpr_kernarg_segment_ptr 1')
    A('  .amdhsa_system_sgpr_workgroup_id_x 1')
    A('.end_amdhsa_kernel')
    return '\n'.join(L) + '\n', (NW+1)*64, LDS

if __name__ == '__main__':
    import json
    cfg = json.loads(sys.argv[2]) if len(sys.argv) > 2 else {}
    s, blk, lds = gen(**cfg)
    open(sys.argv[1], 'w').write(s)
    print(blk, lds)
```
